```python
import torch

def _softmax(x, axis=-1):
    return torch.softmax(x, dim=axis)

def _gelu(x):
    return torch.nn.functional.gelu(x, approximate='tanh')

def _silu(x):
    return torch.nn.functional.silu(x)

def _sigmoid(x):
    return torch.sigmoid(x)

def _layernorm(x, axis=-1, eps=1e-05):
    m = x.mean(dim=axis, keepdim=True)
    v = x.var(dim=axis, keepdim=True, unbiased=False)
    return (x - m) / torch.sqrt(v + eps)

def _scatter_add(tgt, idx, src, axis=0):
    return tgt.clone().index_add_(axis, idx, src)

def _segment_sum(src, seg, n):
    out = torch.zeros((n,) + src.shape[1:], dtype=src.dtype)
    return out.index_add_(0, seg, src)

def _pad(x, pw):
    flat = tuple((v for pair in reversed(pw) for v in pair))
    return torch.nn.functional.pad(x, flat)
kernel_name = 'sequential_preLN__ssm_conv_s4d__mixer_gmlp__prompt'

def setup_inputs():

    _w = lambda a: (lambda t: t.to(torch.bfloat16) if t.is_floating_point() else t)(torch.as_tensor(a))

    def _A_setup():
        Bsz, L, D, N = (1, 2048, 640, 128)
        return {'u': _w((lambda *s: torch.randn(*s, dtype=torch.bfloat16) * 0.05)(Bsz, L, D)), 'log_A_real': _w((lambda *s: torch.randn(*s, dtype=torch.bfloat16) * 6.4)(D, N) * 0.5), 'A_imag': _w((lambda *s: torch.randn(*s, dtype=torch.bfloat16) * 0.05)(D, N) * 3.14), 'C_real': _w((lambda *s: torch.randn(*s, dtype=torch.bfloat16) * 0.05)(D, N) / N ** 0.5), 'C_imag': _w((lambda *s: torch.randn(*s, dtype=torch.bfloat16) * 0.05)(D, N) / N ** 0.5), 'log_dt': _w((lambda *s: torch.randn(*s, dtype=torch.bfloat16) * 0.05)(D) * 0.5 - 4.0), 'D_skip': _w((lambda *s: torch.randn(*s, dtype=torch.bfloat16) * 0.05)(D))}
    _A_in = _A_setup()

    def _B_setup():
        B, S, D, F = (1, 2048, 640, 1728)
        Fh = F // 2
        return {'x': _w((lambda *s: torch.randn(*s, dtype=torch.bfloat16) * 0.05)(B, S, D)), 'w_in': _w((lambda *s: torch.randn(*s, dtype=torch.bfloat16) * 0.4)(D, 2 * Fh)), 'w_sp': _w(0.01 * (lambda *s: torch.randn(*s, dtype=torch.bfloat16) * 0.4)(S, S)), 'b_sp': _w(1.0 + 0.01 * (lambda *s: torch.randn(*s, dtype=torch.bfloat16) * 0.05)(S)), 'w_out': _w((lambda *s: torch.randn(*s, dtype=torch.bfloat16) * 0.05)(Fh, D))}
    _B_in = _B_setup()
    return {'A_u': _A_in['u'], 'A_log_A_real': _A_in['log_A_real'], 'A_A_imag': _A_in['A_imag'], 'A_C_real': _A_in['C_real'], 'A_C_imag': _A_in['C_imag'], 'A_log_dt': _A_in['log_dt'], 'A_D_skip': _A_in['D_skip'], 'B_x': _B_in['x'], 'B_w_in': _B_in['w_in'], 'B_w_sp': _B_in['w_sp'], 'B_b_sp': _B_in['b_sp'], 'B_w_out': _B_in['w_out']}

def reference(A_u, A_log_A_real, A_A_imag, A_C_real, A_C_imag, A_log_dt, A_D_skip, B_x, B_w_in, B_w_sp, B_b_sp, B_w_out):

    def _A_ref(u, log_A_real, A_imag, C_real, C_imag, log_dt, D_skip):
        L = u.shape[1]
        dt = torch.exp(log_dt)
        A = -torch.exp(log_A_real) + 1j * A_imag
        C = (C_real + 1j * C_imag) * dt[:, None]
        pos = (lambda x, dt: x.to(dt))(torch.arange(L), log_dt.dtype)
        P = torch.exp((A * dt[:, None])[:, :, None] * pos[None, None, :])
        K = 2.0 * torch.einsum('dn,dnl->dl', C, P).real
        L2 = 2 * L
        u_t = (lambda x, *d: x.permute(*d))(u, 0, 2, 1)
        Kf = (lambda x, *a, **k: torch.fft.rfft(x.float(), *a, **k))(K, L2)
        Uf = (lambda x, *a, **k: torch.fft.rfft(x.float(), *a, **k))(u_t, L2)
        y = (lambda x, *a, **k: torch.fft.irfft(x, *a, **k).to(torch.bfloat16))(Uf * Kf[None, :, :], L2)[:, :, :L]
        y = (lambda x, *d: x.permute(*d))(y, 0, 2, 1)
        return y + u * D_skip[None, None, :]

    def _B_ref(x, w_in, w_sp, b_sp, w_out):
        B, S, D = x.shape
        F = w_in.shape[-1]
        Fh = F // 2
        z = _gelu(torch.einsum('bsd,df->bsf', x, w_in))
        z1 = z[..., :Fh].clone()
        z2 = _layernorm(z[..., Fh:], axis=-1)
        g = torch.einsum('ts,bsf->btf', w_sp, z2) + b_sp[None, :, None]
        return torch.einsum('bsf,fd->bsd', z1 * g, w_out)
    x = A_u
    h = x + _A_ref(_layernorm(x, axis=-1), A_log_A_real, A_A_imag, A_C_real, A_C_imag, A_log_dt, A_D_skip)
    h2 = h + _B_ref(_layernorm(h, axis=-1), B_w_in, B_w_sp, B_b_sp, B_w_out)
    return h2
```

```python
import re

TRANS = ("v_exp_f32", "v_log_f32", "v_rcp_f32", "v_rsq_f32", "v_sqrt_f32", "v_sin_f32", "v_cos_f32")

_reg_re = re.compile(r"^(-|abs\()?\|?([vsa])(\d+)\|?\)?$|^(-)?([vsa])\[(\d+):(\d+)\]$")


def parse_reg(tok):
    tok = tok.strip()
    if tok in ("vcc",):
        return {("s", 106), ("s", 107)}
    if tok == "vcc_lo":
        return {("s", 106)}
    if tok == "vcc_hi":
        return {("s", 107)}
    if tok == "exec":
        return {("s", 126), ("s", 127)}
    if tok in ("exec_lo",):
        return {("s", 126)}
    if tok in ("exec_hi",):
        return {("s", 127)}
    if tok == "m0":
        return {("s", 124)}
    t = tok.lstrip("-")
    if t.startswith("abs(") and t.endswith(")"):
        t = t[4:-1]
    if t.startswith("|") and t.endswith("|"):
        t = t[1:-1]
    m = re.match(r"^([vsa])(\d+)$", t)
    if m:
        return {(m.group(1), int(m.group(2)))}
    m = re.match(r"^([vsa])\[(\d+):(\d+)\]$", t)
    if m:
        return {(m.group(1), i) for i in range(int(m.group(2)), int(m.group(3)) + 1)}
    return set()


def split_ops(s):
    out, depth, cur = [], 0, ""
    for ch in s:
        if ch in "[(":
            depth += 1
        if ch in "])":
            depth -= 1
        if ch == "," and depth == 0:
            out.append(cur.strip())
            cur = ""
        else:
            cur += ch
    if cur.strip():
        out.append(cur.strip())
    return out


class Ins:
    __slots__ = ("text", "op", "kind", "wr", "rd", "srcC", "srcAB", "states", "dpp", "opsel_dst", "wide_store", "passes", "lanesel")

    def __init__(self, text):
        self.text = text
        t = text.split(";")[0].strip()
        parts = t.split(None, 1)
        self.op = parts[0]
        rest = parts[1] if len(parts) > 1 else ""
        ops = split_ops(rest)
        mods = ""
        if ops:
            lp = ops[-1].split(None, 1)
            if len(lp) > 1 and not lp[0].endswith(":"):
                ops[-1] = lp[0]
                mods = lp[1]
        op = self.op
        self.wr, self.rd = set(), set()
        self.srcC, self.srcAB = set(), set()
        self.states = 1
        self.dpp = False
        self.opsel_dst = False
        self.wide_store = set()
        self.passes = 0
        self.lanesel = set()
        R = [parse_reg(o) for o in ops]
        if op == "s_nop":
            self.kind = "nop"
            self.states = int(ops[0], 0) + 1
        elif op.startswith("v_mfma"):
            self.kind = "mfma"
            self.wr = R[0]
            self.srcAB = R[1] | R[2]
            self.srcC = R[3]
            self.rd = self.srcAB | self.srcC
            self.passes = 8 if "32x32" in op else 4
        elif op.startswith("v_"):
            self.kind = "trans" if any(op.startswith(x) for x in TRANS) else "valu"
            self.dpp = "_dpp" in op or "row_" in mods or "quad_perm" in mods
            if op.startswith("v_permlane"):
                self.kind = "permlane"
                self.wr = R[0] | R[1]
                self.rd = R[0] | R[1]
            elif op.startswith("v_cmpx"):
                self.wr = R[0] | parse_reg("exec")
                self.rd = set().union(*R[1:])
            elif op.startswith(("v_add_co", "v_sub_co", "v_addc_co", "v_subb_co", "v_subrev_co", "v_div_scale", "v_mad_u64_u32")):
                self.wr = R[0] | R[1]
                self.rd = set().union(*R[2:])
            else:
                self.wr = R[0]
                self.rd = set().union(*R[1:]) if len(R) > 1 else set()
                if op.startswith(("v_fmac", "v_dot2c", "v_pk_fmac", "v_writelane")) or self.dpp or "UNUSED_PRESERVE" in mods:
                    self.rd |= R[0]
                if op.startswith("v_cndmask") and len(ops) == 3:
                    self.rd |= parse_reg("vcc")
                if op.startswith(("v_readlane", "v_writelane")):
                    self.lanesel = R[2]
            if "dst_sel:WORD" in mods or "dst_sel:BYTE" in mods or (re.search(r"op_sel:\[[01],[01],[01],1\]", mods) and not op.startswith("v_pk")):
                self.opsel_dst = True
        elif op.startswith(("buffer_", "global_", "flat_")):
            self.kind = "vmem"
            islds = " lds" in (" " + mods) or "_lds_" in op
            if "load" in op and not islds:
                self.wr = R[0]
                self.rd = set().union(*R[1:])
            elif "atomic" in op and ("sc0" in mods):
                self.wr = R[0]
                self.rd = set().union(*R)
            else:
                self.rd = set().union(*R) if R else set()
                if islds:
                    self.rd |= parse_reg("m0")
            if "store" in op and ("x3" in op or "x4" in op):
                self.wide_store = R[0] if op.startswith("buffer_") else R[1]
        elif op.startswith("ds_"):
            self.kind = "ds"
            if op.startswith(("ds_read", "ds_bpermute", "ds_permute", "ds_swizzle")) or "_rtn" in op:
                self.wr = R[0]
                self.rd = set().union(*R[1:])
                if "d16" in op:
                    self.rd |= R[0]
            else:
                self.rd = set().union(*R)
        elif op.startswith("s_"):
            self.kind = "salu"
            if op.startswith(("s_cmp", "s_bitcmp", "s_cbranch", "s_branch", "s_waitcnt", "s_barrier", "s_endpgm", "s_setprio", "s_sleep", "s_setpc")):
                self.rd = set().union(*R) if R else set()
            else:
                self.wr = R[0] if R else set()
                self.rd = set().union(*R[1:]) if len(R) > 1 else set()
                if "saveexec" in op:
                    self.wr |= parse_reg("exec")
        else:
            raise ValueError("unknown op: " + text)


def required_gap(p, c):
    need = 0
    pv = p.kind in ("valu", "trans", "permlane")
    cv = c.kind in ("valu", "trans", "permlane")
    pw_v = {r for r in p.wr if r[0] in "va"}
    pw_s = {r for r in p.wr if r[0] == "s"}
    if pv:
        if c.kind == "mfma" and pw_v & c.rd:
            need = max(need, 2)
        if c.kind == "permlane" and pw_v & c.rd:
            need = max(need, 2)
        if cv and c.dpp and pw_v & c.rd:
            need = max(need, 2)
        if c.op.startswith(("v_readlane", "v_readfirstlane")) and pw_v & c.rd:
            need = max(need, 1)
        if p.kind == "trans" and cv and c.kind != "trans" and pw_v & c.rd:
            need = max(need, 1)
        if p.kind == "trans" and c.kind in ("vmem", "ds", "trans") and pw_v & c.rd:
            need = max(need, 1)
        if p.opsel_dst and (pw_v & (c.rd | c.wr)):
            need = max(need, 1)
        if pw_s:
            if c.kind == "vmem" and pw_s & c.rd:
                need = max(need, 5)
            if cv and pw_s & c.rd:
                need = max(need, 2)
            if cv and pw_s & c.lanesel:
                need = max(need, 4)
            if c.kind == "salu" and pw_s & c.rd:
                need = max(need, 4)
            ex = parse_reg("exec")
            if pw_s & ex:
                if c.kind == "mfma" or c.kind == "permlane" or c.op.startswith(("v_readlane", "v_readfirstlane", "v_writelane")):
                    need = max(need, 4)
                if cv and c.dpp:
                    need = max(need, 5)
    if p.op.startswith("v_dot") and pw_v & (c.rd | c.wr):
        same_c = False
        if c.op == p.op:
            ops = split_ops(c.text.split(";")[0].strip().split(None, 1)[1])
            ab = parse_reg(ops[1]) | parse_reg(ops[2].split()[0])
            same_c = not (pw_v & ab)
        if not same_c:
            need = max(need, 3)
    if p.kind == "salu":
        if ("s", 124) in p.wr and ("s", 124) in c.rd and c.kind in ("vmem", "ds"):
            need = max(need, 1)
    if p.kind == "mfma":
        P = p.passes
        full = {4: 8, 8: 12}[P]
        if c.kind == "mfma":
            if p.wr & c.srcAB:
                need = max(need, full)
            if p.wr & c.srcC:
                if not (p.wr == c.srcC and p.passes == c.passes):
                    need = max(need, {4: 6, 8: 10}[P])
            elif p.wr & c.wr:
                need = max(need, {4: 6, 8: 10}[P])
        else:
            if p.wr & (c.rd | c.wr):
                need = max(need, full)
            if cv and p.srcC & c.wr:
                need = max(need, {4: 3, 8: 7}[P])
            if c.kind in ("ds", "vmem") and p.srcC & c.wr:
                need = max(need, {4: 3, 8: 7}[P])
    if p.wide_store and (p.wide_store & c.wr):
        need = max(need, 2)
    return need


class Asm:
    def __init__(self):
        self.lines = []
        self.uid = 0

    def __call__(self, text):
        for ln in text.strip("\n").split("\n"):
            s = ln.strip()
            if not s:
                continue
            if s.startswith((";", ".", "//")) or s.endswith(":"):
                self.lines.append(s)
            else:
                self.lines.append(Ins(s))

    def label(self, base="L"):
        self.uid += 1
        return f"{base}_{self.uid}"

    def raw(self, s):
        self.lines.append(s)

    def finalize(self):
        out = []
        window = []

        def gap_needed(ins, hist):
            dist = 0
            need = 0
            for p in reversed(hist):
                g = required_gap(p, ins)
                if g - dist > need:
                    need = g - dist
                dist += p.states
                if dist > 14:
                    break
            return need

        for it in self.lines:
            if isinstance(it, str):
                out.append(it)
                if it.startswith(".amdhsa") or it.startswith(".section") or it.startswith(".globl"):
                    window = []
                continue
            n = gap_needed(it, window)
            while n > 0:
                k = min(n, 16)
                nop = Ins(f"s_nop {k-1}")
                out.append(nop)
                window.append(nop)
                n -= k
            out.append(it)
            window.append(it)
            if it.op in ("s_branch", "s_endpgm", "s_setpc_b64"):
                window = []
            window = window[-24:]
        labels = {}
        for i, it in enumerate(out):
            if isinstance(it, str) and it.endswith(":"):
                labels[it[:-1]] = i
        fixes = []
        for i, it in enumerate(out):
            if isinstance(it, Ins) and (it.op.startswith("s_cbranch") or it.op == "s_branch"):
                tgt = it.text.split(";")[0].split()[1]
                if tgt not in labels:
                    raise ValueError("missing label " + tgt)
                hist = [x for x in out[max(0, i - 40): i + 1] if isinstance(x, Ins)]
                for k in range(len(hist) - 2, -1, -1):
                    if hist[k].op in ("s_branch", "s_endpgm"):
                        hist = hist[k + 1:]
                        break
                j = labels[tgt] + 1
                h = list(hist)
                cnt = 0
                worst = 0
                while j < len(out) and cnt < 14:
                    x = out[j]
                    if isinstance(x, Ins):
                        n = gap_needed(x, h[: len(hist)] + h[len(hist):])
                        dist = sum(y.states for y in h[len(hist):])
                        need = 0
                        d2 = dist
                        for p in reversed(hist):
                            g = required_gap(p, x)
                            need = max(need, g - d2)
                            d2 += p.states
                            if d2 > 14:
                                break
                        worst = max(worst, need)
                        h.append(x)
                        cnt += x.states
                        if x.op in ("s_branch", "s_endpgm"):
                            break
                    j += 1
                if worst > 0:
                    fixes.append((i, worst))
        for i, w in sorted(fixes, reverse=True):
            out.insert(i, Ins(f"s_nop {w-1}"))
        txt = []
        for it in out:
            if isinstance(it, str):
                txt.append(it if (it.endswith(":") or it.startswith((".", ";"))) else "    " + it)
            else:
                txt.append("    " + it.text)
        return "\n".join(txt) + "\n"


def kernel_header(a, name):
    a.raw(".text")
    a.raw(f".globl {name}")
    a.raw(".p2align 8")
    a.raw(f".type {name},@function")
    a.raw(f"{name}:")


def kernel_desc(name, vgpr, sgpr=96):
    acc = (vgpr + 3) // 4 * 4
    return f""".section .rodata,"a"
.p2align 6
.amdhsa_kernel {name}
  .amdhsa_next_free_vgpr {vgpr}
  .amdhsa_next_free_sgpr {sgpr}
  .amdhsa_accum_offset {acc}
  .amdhsa_group_segment_fixed_size 0
  .amdhsa_kernarg_size 120
  .amdhsa_user_sgpr_count 2
  .amdhsa_user_sgpr_kernarg_segment_ptr 1
  .amdhsa_system_sgpr_workgroup_id_x 1
  .amdhsa_float_denorm_mode_32 3
.end_amdhsa_kernel
"""
```

```python
from asmlib import *


def interleave(a, mf, fill, lead=1, span=None):
    n = len(mf)
    span = span or n
    k = len(fill)
    fi = 0
    slots = max(1, span - lead + 1)
    for i, m in enumerate(mf):
        a(m)
        if i + 1 >= lead:
            tgt = min(k, -(-k * (i + 2 - lead) // slots))
            while fi < tgt:
                a(fill[fi]); fi += 1
    while fi < k:
        a(fill[fi]); fi += 1


def loader(a, tag, NS, S, LA, SB, ndma, dma, adv, base, done_label, sW=40, sIt=42, first=None):
    a(f"s_mov_b32 s{sW}, {base}")
    nxt = f"s_add_u32 s{sW}, s{sW}, {SB}\ns_cmp_eq_u32 s{sW}, {base+SB*S}\ns_cselect_b32 s{sW}, {base}, s{sW}"
    for st in range(LA):
        for d in dma():
            a(d)
        a(adv())
        a(nxt)
        if st == 0 and first:
            first()
    a(f"""
    s_waitcnt vmcnt({ndma*(LA-1)})
    s_barrier
    s_mov_b32 s{sIt}, 0
    {tag}_ld:
    s_waitcnt vmcnt({ndma*(LA-2)})
    s_barrier
    """)
    for d in dma():
        a(d)
    a(adv())
    a(nxt)
    a(f"""
    s_add_u32 s{sIt}, s{sIt}, 1
    s_cmp_lt_u32 s{sIt}, {NS - LA}
    s_cbranch_scc1 {tag}_ld
    """)
    for it in range(NS - LA, NS):
        left = max(0, NS - 2 - it)
        a(f"s_waitcnt vmcnt({ndma*left})\ns_barrier")
    a(f"s_branch {done_label}")


def consumer(a, tag, NS, S, SB, rd_addr, rd, mm, base, extra=None, sR=41, sIt=42, span=None):
    a(f"""
    s_mov_b32 s{sR}, {base}
    s_mov_b32 s{sIt}, 0
    """)
    a(rd_addr())
    a("s_barrier")
    for r in rd(0):
        a(r)
    a(f"{tag}_loop:")
    for st in range(2):
        a(f"""
        s_add_u32 s{sR}, s{sR}, {SB}
        s_cmp_eq_u32 s{sR}, {base+SB*S}
        s_cselect_b32 s{sR}, {base}, s{sR}
        """)
        a(rd_addr())
        a("s_waitcnt lgkmcnt(0)\ns_barrier")
        fill = rd(st ^ 1)
        m = mm(st)
        interleave(a, m, fill, span=span or (len(m) * 2) // 3)
        if extra:
            for e in extra(st):
                a(e)
        a(f"s_add_u32 s{sIt}, s{sIt}, 1")
    a(f"""
    s_cmp_lt_u32 s{sIt}, {NS}
    s_cbranch_scc1 {tag}_loop
    """)


def qreduce(a, regs, tmp):
    for op in ("v_permlane16_swap_b32", "v_permlane32_swap_b32"):
        for r, t in zip(regs, tmp):
            a(f"v_mov_b32 v{t}, v{r}")
        for r, t in zip(regs, tmp):
            a(f"{op} v{r}, v{t}")
        for r, t in zip(regs, tmp):
            a(f"v_add_f32 v{r}, v{r}, v{t}")
```

```python
from asmlib import *
from layout import *

NLN, NWI, NWO = 128, 80, 72
A_GRID = NLN + NWI + NWO
A_LDS = 128 * 288 + 512


def srd(a, s, base_lo, base_hi, off, size):
    if off:
        a(f"s_add_u32 s{s}, s{base_lo}, {off}\ns_addc_u32 s{s+1}, s{base_hi}, 0")
    else:
        a(f"s_mov_b32 s{s}, s{base_lo}\ns_mov_b32 s{s+1}, s{base_hi}")
    a(f"s_mov_b32 s{s+2}, {size}\ns_mov_b32 s{s+3}, 0x00020000")


def bf16r(a, dst, src):
    a(f"v_cvt_pk_bf16_f32 v{dst}, v{src}, v{src}\nv_lshlrev_b32 v{dst}, 16, v{dst}")


def gen_A(a):
    name = "prep_kernel"
    kernel_header(a, name)
    a(f"""
    s_cmp_ge_u32 s2, {A_GRID}
    s_cbranch_scc1 A_end
    s_load_dwordx2 s[4:5], s[0:1], {KA['x']}
    s_load_dwordx2 s[6:7], s[0:1], {KA['ws']}
    s_load_dwordx2 s[8:9], s[0:1], {KA['w_in']}
    s_load_dwordx2 s[10:11], s[0:1], {KA['w_out']}
    v_and_b32 v1, 63, v0                 ; lane
    v_lshrrev_b32 v2, 6, v0              ; wave
    v_and_b32 v3, 15, v0                 ; l16
    v_readfirstlane_b32 s3, v2
    v_bfe_u32 v4, v0, 4, 2               ; lane>>4
    s_cmp_ge_u32 s2, {NLN}
    s_cbranch_scc1 A_w
    """)
    a(f"""
    s_and_b32 s12, s2, 7
    s_lshl_b32 s12, s12, 4
    s_lshr_b32 s13, s2, 3
    s_add_u32 s12, s12, s13              ; tb
    v_lshrrev_b32 v5, 4, v0
    s_mul_i32 s13, s12, {16*1280}
    v_mul_u32_u24 v6, 1280, v5
    v_lshl_add_u32 v6, v3, 4, v6         ; row*1280 + l16*16
    v_mul_u32_u24 v7, 1344, v5
    v_lshl_add_u32 v7, v3, 4, v7
    s_waitcnt lgkmcnt(0)
    """)
    srd(a, 16, 4, 5, 0, L * D * 2)
    for c in range(5):
        a(f"buffer_load_dwordx4 v[{8+4*c}:{11+4*c}], v6, s[16:19], s13 offen offset:{256*c}")
    srd(a, 20, 6, 7, XT_OFF, L * D * 2)
    srd(a, 24, 6, 7, MST_OFF, 16384)
    srd(a, 28, 6, 7, ZST_OFF, 2048 * 128)
    a(f"""
    v_mov_b32 v30, -1
    v_mov_b32 v31, -1
    v_lshlrev_b32 v32, 3, v0
    s_lshl_b32 s14, s2, 11
    buffer_store_dwordx2 v[30:31], v32, s[28:31], s14 offen
    v_lshrrev_b32 v33, 5, v1             ; h
    v_bfe_u32 v34, v1, 2, 2              ; r
    v_lshl_add_u32 v33, v33, 3, v34      ; 8h+r
    v_mul_u32_u24 v33, 1344, v33
    v_bfe_u32 v34, v1, 4, 1              ; dblk
    v_lshl_add_u32 v33, v34, 5, v33
    v_and_b32 v35, 3, v1
    v_lshl_add_u32 v33, v35, 3, v33
    v_mul_u32_u24 v35, 320, v2
    v_add_u32 v33, v33, v35
    v_mul_u32_u24 v36, 160, v2
    v_lshl_add_u32 v36, v34, 4, v36
    v_add_u32 v36, v36, v3
    v_lshlrev_b32 v36, 12, v36
    v_lshrrev_b32 v35, 5, v1
    v_lshl_add_u32 v36, v35, 4, v36
    s_lshl_b32 s15, s12, 5               ; 32*tb
    s_mov_b32 s32, 0x3f803f80
    s_mov_b32 s33, 0x00003f80
    s_mov_b32 s34, 0x3f800000
    v_mov_b32 v37, 0
    v_mov_b32 v38, 0
    """)
    for c in range(5):
        a(f"s_waitcnt vmcnt({5-c})")
        a(f"ds_write_b128 v7, v[{8+4*c}:{11+4*c}] offset:{256*c}")
        for k in range(4):
            a(f"v_dot2_f32_bf16 v{37+(k&1)}, v{8+4*c+k}, s32, v{37+(k&1)}")
    a("""
    s_waitcnt lgkmcnt(0)
    s_barrier
    """)
    for k in range(5):
        a(f"ds_read_b64_tr_b16 v[{40+4*k}:{41+4*k}], v33 offset:{64*k}")
        a(f"ds_read_b64_tr_b16 v[{42+4*k}:{43+4*k}], v33 offset:{64*k+4*1344}")
    a("v_add_f32 v37, v37, v38")
    for sh in (8, 4, 2, 1):
        a(f"v_add_f32_dpp v37, v37, v37 row_ror:{sh} row_mask:0xf bank_mask:0xf")
    a(f"v_mul_f32 v37, {hex(f32bits(-1.0/640))}, v37      ; -mean")
    for k in range(5):
        a(f"s_waitcnt lgkmcnt({8-2*k})")
        a(f"s_add_u32 s35, s15, {131072*k}")
        a(f"buffer_store_dwordx4 v[{40+4*k}:{43+4*k}], v36, s[20:23], s35 offen")
    a("v_mov_b32 v62, 0\nv_mov_b32 v63, 0\nv_mov_b32 v64, 0\nv_mov_b32 v65, 0")
    for k in range(20):
        t = 66 + 2 * (k % 4)
        a(f"v_dot2_f32_bf16 v{t}, v{8+k}, s33, v37")
        a(f"v_dot2_f32_bf16 v{t+1}, v{8+k}, s34, v37")
        if k >= 2:
            tp = 66 + 2 * ((k - 2) % 4)
            ac = 62 + 2 * (k & 1)
            a(f"v_pk_fma_f32 v[{ac}:{ac+1}], v[{tp}:{tp+1}], v[{tp}:{tp+1}], v[{ac}:{ac+1}]")
    for k in (18, 19):
        tp = 66 + 2 * (k % 4)
        ac = 62 + 2 * (k & 1)
        a(f"v_pk_fma_f32 v[{ac}:{ac+1}], v[{tp}:{tp+1}], v[{tp}:{tp+1}], v[{ac}:{ac+1}]")
    a("""
    v_pk_add_f32 v[62:63], v[62:63], v[64:65]
    v_add_f32 v62, v62, v63
    """)
    for sh in (8, 4, 2, 1):
        a(f"v_add_f32_dpp v62, v62, v62 row_ror:{sh} row_mask:0xf bank_mask:0xf")
    a(f"v_mul_f32 v62, {hex(f32bits(1.0/640))}, v62       ; var")
    bf16r(a, 62, 62)
    a(f"v_add_f32 v62, {hex(f32bits(1e-5))}, v62")
    bf16r(a, 62, 62)
    a("v_sqrt_f32 v62, v62")
    bf16r(a, 62, 62)
    a("v_rcp_f32 v62, v62")
    a("v_mul_f32 v37, -1.0, v37")
    bf16r(a, 37, 37)
    a(f"""
    v_lshlrev_b32 v63, 2, v5
    s_lshl_b32 s14, s12, 6
    v_cmp_eq_u32 vcc, 0, v3
    s_and_saveexec_b64 s[36:37], vcc
    buffer_store_dword v37, v63, s[24:27], s14 offen
    buffer_store_dword v62, v63, s[24:27], s14 offen offset:0
    """)
    a.lines.pop()
    a(f"""
    s_add_u32 s14, s14, 8192
    buffer_store_dword v62, v63, s[24:27], s14 offen
    s_endpgm
    """)
    a(f"""
    A_w:
    s_cmp_ge_u32 s2, {NLN+NWI}
    s_cbranch_scc1 A_wo
    """)

    def wrole(which):
        if which == "in":
            CH, R, G, NI, magic = 14, 128, 7, 7, 4682
            a(f"""
            s_sub_u32 s12, s2, {NLN}
            s_and_b32 s13, s12, 15               ; n
            s_lshr_b32 s14, s12, 4               ; kc
            s_lshr_b32 s15, s13, 1               ; a
            s_mul_i32 s32, s15, 224
            s_and_b32 s33, s13, 1                ; p
            s_lshl_b32 s34, s33, 3               ; 8p
            s_lshl_b32 s35, s33, 1
            s_sub_u32 s35, 8, s35
            s_cmp_eq_u32 s15, 7
            s_cselect_b32 s36, 10, 14
            s_mul_i32 s37, s14, {128*3456}
            s_add_u32 s37, s37, s32              ; soffset
            s_waitcnt lgkmcnt(0)
            """)
            srd(a, 16, 8, 9, 0, D * F * 2)
            pitch = 3456
        else:
            CH, R, G, NI, magic = 10, 96, 5, 4, 6554
            a(f"""
            s_sub_u32 s12, s2, {NLN+NWI}
            s_and_b32 s13, s12, 7                ; nt
            s_lshr_b32 s14, s12, 3               ; kc 0..8
            s_mul_i32 s37, s14, {96*1280}
            s_mul_i32 s32, s13, 160
            s_add_u32 s37, s37, s32
            s_waitcnt lgkmcnt(0)
            """)
            srd(a, 16, 10, 11, 0, FH * D * 2)
            pitch = 1280
        a(f"s_mov_b32 s38, {magic}\ns_mov_b32 s39, {pitch}")
        for i in range(NI):
            a(f"""
            v_add_u32 v5, {256*i}, v0
            v_mul_u32_u24 v6, s38, v5
            v_lshrrev_b32 v6, 16, v6             ; row
            v_mul_u32_u24 v7, {CH}, v6
            v_sub_u32 v7, v5, v7                 ; chunk
            v_mul_u32_u24 v8, s39, v6
            v_mul_u32_u24 v{50+i}, 288, v6
            v_lshl_add_u32 v{50+i}, v7, 4, v{50+i}
            """)
            if which == "in":
                a(f"""
                v_add_u32 v9, s34, v7
                v_subrev_u32 v10, 14, v9
                v_min_u32 v9, v9, v10
                v_lshl_add_u32 v8, v9, 4, v8
                v_add_u32 v10, 1728, v8
                v_cmp_gt_u32 vcc, s35, v7
                v_cndmask_b32 v8, v8, v10, vcc
                v_cmp_gt_u32 vcc, s36, v9
                v_mov_b32 v9, 0x40000000
                v_cndmask_b32 v8, v9, v8, vcc
                """)
            else:
                a(f"""
                v_lshl_add_u32 v8, v7, 4, v8
                v_cmp_gt_u32 vcc, {R}, v6
                v_mov_b32 v9, 0x40000000
                v_cndmask_b32 v8, v9, v8, vcc
                """)
            a(f"buffer_load_dwordx4 v[{12+4*i}:{15+4*i}], v8, s[16:19], s37 offen")
        if which == "in":
            srd(a, 20, 6, 7, WINT_OFF, 16 * 10 * 14 * 1024)
            srd(a, 24, 6, 7, CSP_OFF, 5 * 16 * 112 * 4)
            a(f"""
            v_mov_b32 v5, 0
            v_lshlrev_b32 v6, 2, v0
            v_cmp_gt_u32 vcc, 128, v0
            s_and_saveexec_b64 s[40:41], vcc
            ds_write_b32 v6, v5 offset:{128*288}
            s_mov_b64 exec, s[40:41]
            s_mul_i32 s42, s13, 10
            s_lshl_b32 s43, s14, 1
            s_add_u32 s42, s42, s43
            s_lshr_b32 s43, s3, 1
            s_add_u32 s42, s42, s43
            s_mul_i32 s42, s42, 14
            s_and_b32 s43, s3, 1
            s_add_u32 s42, s42, s43
            s_lshl_b32 s42, s42, 10
            """)
            gstride = 2048
        else:
            srd(a, 20, 6, 7, WOUT_OFF, 8 * 27 * 5 * 1024)
            a(f"""
            s_mul_i32 s42, s13, 27
            s_mul_i32 s43, s14, 3
            s_add_u32 s42, s42, s43
            s_add_u32 s42, s42, s3
            s_mul_i32 s42, s42, {5*1024}
            """)
            gstride = 1024
        a(f"""
        v_bfe_u32 v5, v1, 2, 2               ; r
        v_lshl_add_u32 v5, v4, 2, v5         ; 4q+r
        v_lshl_add_u32 v5, v2, 5, v5         ; +32w
        v_mul_u32_u24 v5, 288, v5
        v_and_b32 v6, 3, v1
        v_lshl_add_u32 v5, v6, 3, v5
        v_lshlrev_b32 v7, 4, v1              ; lane*16
        """)
        for i in range(NI):
            a(f"s_waitcnt vmcnt({NI-1-i})\nds_write_b128 v{50+i}, v[{12+4*i}:{15+4*i}]")
        a("s_waitcnt lgkmcnt(0)\ns_barrier")
        if which == "out":
            a("s_cmp_ge_u32 s3, 3\ns_cbranch_scc1 A_end")
        for g in range(G):
            a(f"ds_read_b64_tr_b16 v[{12+4*g}:{13+4*g}], v5 offset:{32*g}")
            a(f"ds_read_b64_tr_b16 v[{14+4*g}:{15+4*g}], v5 offset:{32*g+16*288}")
        if which == "in":
            a("s_mov_b32 s32, 0x3f803f80\nv_lshlrev_b32 v6, 2, v3")
        for g in range(G):
            a(f"s_waitcnt lgkmcnt({2*(G-1-g)})" if which == "out" else f"s_waitcnt lgkmcnt({min(15,2*(G-1-g)+g)})")
            a(f"s_add_u32 s43, s42, {gstride*g}")
            a(f"buffer_store_dwordx4 v[{12+4*g}:{15+4*g}], v7, s[20:23], s43 offen")
            if which == "in":
                a(f"v_dot2_f32_bf16 v8, v{12+4*g}, s32, 0")
                for k in range(1, 4):
                    a(f"v_dot2_f32_bf16 v8, v{12+4*g+k}, s32, v8")
                a(f"ds_add_f32 v6, v8 offset:{128*288+64*g}")
        if which == "in":
            a(f"""
            s_waitcnt lgkmcnt(0)
            s_barrier
            v_lshlrev_b32 v6, 2, v0
            v_cmp_gt_u32 vcc, 112, v0
            s_and_saveexec_b64 s[40:41], vcc
            s_cbranch_execz A_end
            ds_read_b32 v8, v6 offset:{128*288}
            s_lshl_b32 s43, s14, 4
            s_add_u32 s43, s43, s13
            s_mul_i32 s43, s43, 448
            s_waitcnt lgkmcnt(0)
            buffer_store_dword v8, v6, s[24:27], s43 offen
            """)
        a("s_endpgm")

    wrole("in")
    a("A_wo:")
    wrole("out")
    a("A_end:\ns_endpgm")
    return name, 80


import struct
def f32bits(x):
    return struct.unpack("<I", struct.pack("<f", x))[0]
```

```python
from asmlib import *
from layout import *
from kA import srd, bf16r, f32bits
import math

import os
DEBUG_K = int(os.environ.get('DEBUG_K', '0'))
B_GRID = 640
MT, PART, KC, KCS = 0, 6144, 24576, 4160
TAB = 41216
U = 42560
X = 47232
B_LDS = 51328
LOG2E = f32bits(math.log2(math.e))
INV2PI = f32bits(1.0 / (2 * math.pi))


STAMP = int(os.environ.get('STAMP', '0'))


def stamp(a, i):
    if STAMP:
        if i == 0:
            a("s_memrealtime s[90:91]")
        a(f"s_memtime s[{60+2*i}:{61+2*i}]\ns_waitcnt lgkmcnt(0)")


def stamp_dump(a, n, wsl, wsh, off):
    if not STAMP:
        return
    a("s_waitcnt vmcnt(0)\ns_memrealtime s[92:93]\ns_getreg_b32 s94, hwreg(HW_REG_XCC_ID)\ns_getreg_b32 s95, hwreg(HW_REG_HW_ID)")
    stamp(a, n - 1)
    a(f"s_add_u32 s56, s{wsl}, {off}\ns_addc_u32 s57, s{wsh}, 0\ns_lshl_b32 s58, s2, 3\ns_add_u32 s58, s58, s3\ns_lshl_b32 s58, s58, 6\nv_mov_b32 v2, s58\ns_mov_b64 exec, 1")
    for i in range(n):
        a(f"v_mov_b32 v3, s{60+2*i}\nglobal_store_dword v2, v3, s[56:57] offset:{4*i}")
    for i, r in ((12, 90), (13, 92), (14, 94), (15, 95)):
        a(f"v_mov_b32 v3, s{r}\nglobal_store_dword v2, v3, s[56:57] offset:{4*i}")


def pk_sq(a, E, T):
    a(f"v_pk_mul_f32 v[{T}:{T+1}], v[{E}:{E+1}], v[{E}:{E+1}] op_sel:[0,0] op_sel_hi:[1,0]")
    return f"v_pk_fma_f32 v[{E}:{E+1}], v[{E}:{E+1}], v[{E}:{E+1}], v[{T}:{T+1}] op_sel:[1,1,0] op_sel_hi:[0,1,1] neg_lo:[0,1,0]"


def cmul1(H, E, C):
    return f"v_pk_mul_f32 v[{H}:{H+1}], v[{E}:{E+1}], v[{C}:{C+1}] op_sel:[0,0] op_sel_hi:[1,0]"


def cmul2(H, E, C):
    return f"v_pk_fma_f32 v[{H}:{H+1}], v[{E}:{E+1}], v[{C}:{C+1}], v[{H}:{H+1}] op_sel:[1,1,0] op_sel_hi:[0,1,1] neg_lo:[0,1,0]"


def gen_B(a, prefetch=int(os.environ.get('PF', '1'))):
    name = "conv_kernel"
    kernel_header(a, name)
    a(f"""
    s_cmp_ge_u32 s2, {B_GRID}
    s_cbranch_scc1 B_end
    """)
    stamp(a, 0)
    a(f"""
    s_load_dwordx4 s[4:7], s[0:1], {KA['logA']}
    s_load_dwordx4 s[8:11], s[0:1], {KA['Cre']}
    s_load_dwordx4 s[12:15], s[0:1], {KA['logdt']}
    s_load_dwordx2 s[16:17], s[0:1], {KA['ws']}
    s_load_dwordx2 s[18:19], s[0:1], {KA['w_sp']}
    v_and_b32 v1, 63, v0                 ; lane
    v_lshrrev_b32 v2, 6, v0              ; wave
    v_and_b32 v3, 15, v0                 ; i16
    v_readfirstlane_b32 s3, v2
    v_bfe_u32 v4, v0, 4, 2               ; q
    v_and_b32 v5, 127, v0                ; mode n
    s_lshl_b32 s20, s2, 8                ; d*256
    v_lshl_add_u32 v6, v5, 1, s20
    s_lshl_b32 s21, s2, 1
    s_and_b32 s22, s21, 0xfffffffc
    s_lshl_b32 s23, s2, 12               ; d*4096
    v_lshl_add_u32 v7, v0, 4, s23
    v_lshlrev_b32 v8, 5, v0
    s_waitcnt lgkmcnt(0)
    """)
    stamp(a, 1)
    a(f"""
    global_load_ushort v10, v6, s[4:5]
    global_load_ushort v11, v6, s[6:7]
    global_load_ushort v12, v6, s[8:9]
    global_load_ushort v13, v6, s[10:11]
    s_load_dword s24, s[12:13], s22
    s_load_dword s25, s[14:15], s22
    s_add_u32 s26, s16, {MST_OFF}
    s_addc_u32 s27, s17, 0
    s_add_u32 s28, s16, {MST_OFF+8192}
    s_addc_u32 s29, s17, 0
    global_load_dwordx4 v[100:103], v7, s[16:17]
    global_load_dwordx4 v[104:107], v8, s[26:27]
    global_load_dwordx4 v[108:111], v8, s[26:27] offset:16
    global_load_dwordx4 v[112:115], v8, s[28:29]
    global_load_dwordx4 v[116:119], v8, s[28:29] offset:16
    """)
    NPF = 0
    if prefetch:
        srd(a, 32, 18, 19, 0, L * L * 2)
        a(f"s_mul_i32 s30, s2, 16384\nv_lshlrev_b32 v9, 4, v0")
        a("s_cmp_ge_u32 s2, 512\ns_cbranch_scc1 B_nopf")
        for i in range(4):
            a(f"buffer_load_dwordx4 v[120:123], v9, s[32:35], s30 offen offset:0" if i == 0 else
              f"s_add_u32 s30, s30, 4096\nbuffer_load_dwordx4 v[120:123], v9, s[32:35], s30 offen")
        a("B_nopf:")
    stamp(a, 2)
    a(f"""
    v_mov_b32 v20, 0
    v_mov_b32 v21, 0
    v_mov_b32 v22, 0
    v_mov_b32 v23, 0
    v_lshlrev_b32 v24, 4, v0
    v_cmp_gt_u32 vcc, 32, v0
    s_and_saveexec_b64 s[36:37], vcc
    ds_write_b128 v24, v[20:23] offset:{U}
    v_lshrrev_b32 v25, 1, v0
    v_mul_u32_u24 v25, {KCS}, v25
    v_and_b32 v26, 1, v0
    v_lshl_add_u32 v25, v26, 4, v25
    v_cmp_gt_u32 vcc, 8, v0
    s_and_b64 exec, exec, vcc
    ds_write_b128 v25, v[20:23] offset:{KC+4096}
    ds_write_b32 v20, v20 offset:{TAB+1284}
    s_mov_b64 exec, s[36:37]
    """)
    K0 = 0x4380 - 256
    a(f"""
    v_lshlrev_b32 v25, 3, v0
    v_sub_u32 v25, 2047, v25            ; lag0
    s_mov_b32 s38, {(-2*K0 + TAB) & 0xffffffff}
    v_mov_b32 v26, s38
    s_mov_b32 s43, {TAB}
    """)
    GA = 60
    for e in range(0, 12, 2):
        a(f"""
        v_subrev_u32 v27, {e}, v25
        v_subrev_u32 v28, {e+1}, v25
        v_cvt_f32_i32 v29, v27
        v_cvt_f32_i32 v30, v28
        v_cvt_pk_bf16_f32 v29, v29, v30
        v_min_i32 v27, 255, v27
        v_min_i32 v28, 255, v28
        v_mad_u32_u16 v{GA+e}, v29, 2, v26
        v_mad_u32_u16 v{GA+e+1}, v29, 2, v26 op_sel:[1,0,0,0]
        v_lshl_add_u32 v27, v27, 1, s43
        v_lshl_add_u32 v28, v28, 1, s43
        v_max_i32 v{GA+e}, v{GA+e}, v27
        v_max_i32 v{GA+e+1}, v{GA+e+1}, v28
        v_min_u32 v{GA+e}, {TAB+1284}, v{GA+e}
        v_min_u32 v{GA+e+1}, {TAB+1284}, v{GA+e+1}
        """)
    a(f"""
    v_lshlrev_b32 v31, 5, v2             ; 32w
    v_lshl_add_u32 v31, v4, 2, v31       ; +4q
    v_mul_u32_u24 v31, 48, v31
    v_cmp_gt_u32 vcc, 8, v3
    v_mov_b32 v32, 8
    v_mov_b32 v33, 32
    v_cndmask_b32 v32, v32, v33, vcc
    v_add_u32 v32, v31, v32              ; C3 addr
    v_cvt_f32_u32 v34, v3                ; mf
    v_mul_u32_u24 v35, 48, v5
    v_lshrrev_b32 v36, 7, v0             ; half
    v_lshl_add_u32 v37, v36, 3, v35      ; +8*half  (C2/C4 @16)
    v_xor_b32 v38, 1, v36
    v_lshl_add_u32 v38, v38, 3, v35
    v_mul_u32_u24 v39, 768, v36
    v_add_u32 v39, 256, v39
    v_cvt_f32_u32 v39, v39               ; tau
    """)
    stamp(a, 3)
    npf = "vmcnt(5)"
    a(f"""
    s_waitcnt lgkmcnt(0)
    s_and_b32 s21, s21, 2
    s_lshl_b32 s21, s21, 3               ; 0 or 16
    s_lshr_b32 s24, s24, s21
    s_lshl_b32 s24, s24, 16
    s_lshr_b32 s25, s25, s21
    s_lshl_b32 s25, s25, 16              ; D_skip f32
    v_mov_b32 v40, s24
    v_mul_f32 v40, {hex(LOG2E)}, v40
    v_exp_f32 v40, v40
    """)
    bf16r(a, 40, 40)
    stamp(a, 4)
    if prefetch:
        a("s_cmp_ge_u32 s2, 512\ns_cbranch_scc1 B_w5\ns_waitcnt vmcnt(9)\ns_branch B_w5d\nB_w5:\ns_waitcnt vmcnt(5)\nB_w5d:")
    else:
        a("s_waitcnt vmcnt(5)")
    stamp(a, 5)
    a(f"""
    v_lshlrev_b32 v10, 16, v10
    v_lshlrev_b32 v11, 16, v11
    v_lshlrev_b32 v12, 16, v12
    v_lshlrev_b32 v13, 16, v13
    v_mul_f32 v10, {hex(LOG2E)}, v10
    v_exp_f32 v10, v10
    """)
    bf16r(a, 10, 10)
    a(f"""
    v_mul_f32 v10, v10, v40
    v_mul_f32 v11, v11, v40
    v_mul_f32 v44, {hex(f32bits(-math.log2(math.e)))}, v10    ; zr'
    v_mul_f32 v45, {hex(INV2PI)}, v11                         ; zi'
    v_mul_f32 v12, v12, v40
    v_mul_f32 v13, v13, v40
    v_add_f32 v46, v12, v12              ; C1r
    v_add_f32 v47, v13, v13              ; C1i
    v_mul_f32 v48, v44, v39
    v_mul_f32 v49, v45, v39
    v_exp_f32 v48, v48
    v_fract_f32 v49, v49
    v_cos_f32 v50, v49
    v_sin_f32 v51, v49
    ds_write_b128 v35, v[44:47] offset:{MT}
    v_pk_mul_f32 v[50:51], v[50:51], v[48:49] op_sel:[0,0] op_sel_hi:[1,0]
    """)
    a(cmul1(52, 50, 46)); a(cmul2(52, 50, 46))
    a(cmul1(54, 50, 52)); a(cmul2(54, 50, 52))
    a(f"""
    ds_write_b64 v37, v[52:53] offset:{MT+16}
    ds_write_b64 v38, v[54:55] offset:{MT+32}
    s_waitcnt lgkmcnt(0)
    s_barrier
    """)
    stamp(a, 6)
    PA = [72 + 4 * e for e in range(4)]
    PB = [88, 92, 96, 124]
    PC = [128 + 2 * e for e in range(4)]
    E = [10, 12, 14, 16]
    T = [18, 20, 22, 24]
    FR = dict(lo0=136, lo2=140, h1=144, h2=148, h3=152, h4=156)
    ACC = [40, 44, 48, 52]
    for k in range(16):
        a(f"v_mov_b32 v{40+k}, 0")
    a("s_mov_b32 s39, 0\nB_kloop:")
    for e in range(4):
        a(f"ds_read_b128 v[{PA[e]}:{PA[e]+3}], v31 offset:{MT+48*e}")
    for e in range(4):
        a(f"ds_read_b128 v[{PB[e]}:{PB[e]+3}], v31 offset:{MT+48*e+16}")
        a(f"ds_read_b64 v[{PC[e]}:{PC[e]+1}], v32 offset:{MT+48*e}")
    a("v_add_u32 v31, 768, v31\nv_add_u32 v32, 768, v32")
    for e in range(4):
        a(f"s_waitcnt lgkmcnt({11-e})")
        a(f"v_pk_mul_f32 v[{T[e]}:{T[e]+1}], v[{PA[e]}:{PA[e]+1}], v[34:35] op_sel:[0,0] op_sel_hi:[1,0]")
    for e in range(4):
        a(f"v_fract_f32 v{T[e]+1}, v{T[e]+1}")
    for e in range(4):
        a(f"v_exp_f32 v{T[e]}, v{T[e]}")
    for e in range(4):
        a(f"v_cos_f32 v{E[e]}, v{T[e]+1}")
    for e in range(4):
        a(f"v_sin_f32 v{E[e]+1}, v{T[e]+1}")
    for e in range(4):
        a(f"v_pk_mul_f32 v[{E[e]}:{E[e]+1}], v[{E[e]}:{E[e]+1}], v[{T[e]}:{T[e]+1}] op_sel:[0,0] op_sel_hi:[1,0]")

    def sq2():
        for _ in range(2):
            pend = [pk_sq(a, E[e], T[e]) for e in range(4)]
            for p in pend:
                a(p)

    def cm(C, fr):
        for e in range(4):
            a(cmul1(T[e], E[e], C[e]))
        for e in range(4):
            a(cmul2(T[e], E[e], C[e]))
        for e in range(4):
            a(f"v_cvt_pk_bf16_f32 v{fr+e}, v{T[e]}, -v{T[e]+1}")

    for e in range(4):
        a(f"v_cvt_pk_bf16_f32 v{FR['lo0']+e}, v{E[e]}, v{E[e]+1}")
    sq2()
    for e in range(4):
        a(f"v_cvt_pk_bf16_f32 v{FR['lo2']+e}, v{E[e]}, v{E[e]+1}")
    sq2()
    a("s_waitcnt lgkmcnt(0)")
    cm([p + 2 for p in PA], FR['h1'])
    cm(PB, FR['h2'])
    mf = lambda acc, x, y: a(f"v_mfma_f32_16x16x32_bf16 v[{acc}:{acc+3}], v[{FR[x]}:{FR[x]+3}], v[{FR[y]}:{FR[y]+3}], v[{acc}:{acc+3}]")
    mf(ACC[0], 'lo0', 'h1')
    sq2()
    mf(ACC[1], 'lo0', 'h2')
    cm(PC, FR['h3'])
    cm([p + 2 for p in PB], FR['h4'])
    mf(ACC[2], 'lo2', 'h3')
    mf(ACC[3], 'lo2', 'h4')
    a(f"""
    s_add_u32 s39, s39, 1
    s_cmp_lt_u32 s39, 2
    s_cbranch_scc1 B_kloop
    v_lshlrev_b32 v10, 6, v3
    v_lshl_add_u32 v10, v4, 4, v10
    v_lshl_add_u32 v10, v2, 12, v10       ; 4096w + 64 i + 16 q
    """)
    stamp(a, 7)
    if prefetch:
        a("s_cmp_ge_u32 s2, 512\ns_cbranch_scc1 B_w0\ns_waitcnt vmcnt(4)\ns_branch B_w0d\nB_w0:\ns_waitcnt vmcnt(0)\nB_w0d:")
    else:
        a("s_waitcnt vmcnt(0)")
    for t in range(4):
        a(f"ds_write_b128 v10, v[{ACC[t]}:{ACC[t]+3}] offset:{PART+1024*t}")
    a(f"v_lshlrev_b32 v24, 4, v0\nds_write_b128 v24, v[100:103] offset:{X}")
    for k in range(4):
        a(f"""
        v_lshlrev_b32 v12, 16, v{100+k}
        v_and_b32 v13, 0xffff0000, v{100+k}
        v_pk_add_f32 v[12:13], v[12:13], v[{104+2*k}:{105+2*k}] neg_lo:[0,1] neg_hi:[0,1]
        v_cvt_pk_bf16_f32 v14, v12, v13
        v_lshlrev_b32 v12, 16, v14
        v_and_b32 v13, 0xffff0000, v14
        v_pk_mul_f32 v[12:13], v[12:13], v[{112+2*k}:{113+2*k}]
        v_cvt_pk_bf16_f32 v{16+k}, v12, v13
        """)
    a(f"""
    ds_write_b128 v24, v[16:19] offset:{U+512}
    s_waitcnt lgkmcnt(0)
    s_barrier
    """)
    stamp(a, 8)
    for w in range(4):
        a(f"ds_read_b128 v[{40+4*w}:{43+4*w}], v24 offset:{PART+4096*w}")
    a(f"""
    v_mov_b32 v20, 0
    s_waitcnt lgkmcnt(2)
    v_pk_add_f32 v[40:41], v[40:41], v[44:45]
    v_pk_add_f32 v[42:43], v[42:43], v[46:47]
    s_waitcnt lgkmcnt(0)
    v_pk_add_f32 v[48:49], v[48:49], v[52:53]
    v_pk_add_f32 v[50:51], v[50:51], v[54:55]
    v_pk_add_f32 v[40:41], v[40:41], v[48:49]
    v_pk_add_f32 v[42:43], v[42:43], v[50:51]
    s_and_b32 s40, s3, 1
    s_cmp_eq_u32 s40, 1
    s_cbranch_scc1 B_odd
    v_cvt_pk_bf16_f32 v44, v40, v41
    v_cvt_pk_bf16_f32 v45, v42, v43
    v_lshlrev_b32 v12, 3, v1             ; 2*(16m+4q) = 8*lane
    s_lshl_b32 s41, s3, 8
    v_add_u32 v12, s41, v12
    s_cmp_eq_u32 s3, 0
    s_cselect_b32 s42, 0, 32
    v_cmp_le_u32 vcc, s42, v1
    s_and_saveexec_b64 s[36:37], vcc
    ds_write_b64 v12, v[44:45] offset:{TAB}
    s_mov_b64 exec, 1
    s_cmp_eq_u32 s3, 0
    s_cbranch_scc1 B_ev
    ds_write_b16 v20, v44 offset:{TAB+1280}
    B_ev:
    s_mov_b64 exec, s[36:37]
    s_branch B_tabdone
    B_odd:
    v_cvt_pk_bf16_f32 v44, v40, v42
    v_lshlrev_b32 v12, 2, v1             ; 2*(8m+2q) = 4*lane
    s_lshl_b32 s41, s3, 8                ; w1: 256, w3: 768
    s_add_u32 s41, s41, 256
    v_add_u32 v12, s41, v12
    ds_write_b32 v12, v44 offset:{TAB}
    B_tabdone:
    s_waitcnt lgkmcnt(0)
    s_barrier
    """)
    EL = [72 + e for e in range(11)]
    for e in range(11):
        a(f"ds_read_u16 v{EL[e]}, v{GA+e}")
    a(f"""
    v_sub_u32 v10, 3, v3
    v_and_b32 v10, 3, v10                ; a
    v_mul_u32_u24 v10, {KCS}, v10
    v_lshrrev_b32 v11, 2, v3
    v_lshlrev_b32 v11, 3, v11
    v_sub_u32 v10, v10, v11
    v_lshl_add_u32 v10, v4, 4, v10
    s_lshl_b32 s41, s3, 7                ; 64*c0 (c0=2w)
    s_sub_u32 s42, {KC+4056-3584-64}, s41
    v_add_u32 v10, s42, v10
    v_lshlrev_b32 v11, 5, v3
    v_lshl_add_u32 v11, v4, 4, v11
    s_sub_u32 s42, {U+480-64}, s41
    v_add_u32 v11, s42, v11
    s_waitcnt lgkmcnt(0)
    """)
    for c in range(4):
        for k in range(4):
            a(f"v_lshl_or_b32 v{40+4*c+k}, v{EL[c+2*k+1]}, 16, v{EL[c+2*k]}")
        a(f"ds_write_b128 v24, v[{40+4*c}:{43+4*c}] offset:{KC+c*KCS}")
    a("s_waitcnt lgkmcnt(0)\ns_barrier")
    stamp(a, 9)
    if DEBUG_K:
        a(f"""
        s_add_u32 s26, s16, {WS_END}
        s_addc_u32 s27, s17, 0
        global_store_dwordx4 v7, v[40:43], s[26:27]
        s_add_u32 s26, s16, {WS_END+0x280000}
        s_addc_u32 s27, s17, 0
        global_store_dwordx4 v7, v[16:19], s[26:27]
        """)
    AC = [12 + 4 * J for J in range(8)]
    Fr = [[44 + 4 * g for g in range(8)], [124 + 4 * g for g in range(8)]]
    Br = [[76 + 4 * g for g in range(8)]]
    def rdF(s, g):
        off = 512 * (7 - g) + (64 if s == 0 else 0)
        a(f"ds_read_b64 v[{Fr[s][g]}:{Fr[s][g]+1}], v10 offset:{off}")
        a(f"ds_read_b64 v[{Fr[s][g]+2}:{Fr[s][g]+3}], v10 offset:{off+8}")

    def rdB(reg, s, d):
        a(f"ds_read_b128 v[{reg}:{reg+3}], v11 offset:{512*d + (64 if s == 0 else 0)}")

    rdB(Br[0][0], 0, 0)
    for g in range(8):
        rdF(0, g)
    for d in range(1, 8):
        rdB(Br[0][d], 0, d)
    first = set()
    a("s_waitcnt lgkmcnt(7)")
    for d in range(8):
        if d >= 1:
            a(f"s_waitcnt lgkmcnt({min(15, 7-d + 3*d)})")
        for g in range(8 - d):
            J = g + d
            c = f"v[{AC[J]}:{AC[J]+3}]" if J in first else "0"
            first.add(J)
            a(f"v_mfma_f32_16x16x32_bf16 v[{AC[J]}:{AC[J]+3}], v[{Fr[0][g]}:{Fr[0][g]+3}], v[{Br[0][d]}:{Br[0][d]+3}], {c}")
        rdF(1, d)
        rdB(Br[0][d], 1, d)
    for s in range(8):
        a(f"s_waitcnt lgkmcnt({3*(7-s) if 3*(7-s) <= 15 else 15})")
        pairs = [(g, d) for g in range(8) for d in range(8) if max(g, d) == s and g + d <= 7]
        for g, d in pairs:
            J = g + d
            a(f"v_mfma_f32_16x16x32_bf16 v[{AC[J]}:{AC[J]+3}], v[{Fr[1][g]}:{Fr[1][g]+3}], v[{Br[0][d]}:{Br[0][d]+3}], v[{AC[J]}:{AC[J]+3}]")
    stamp(a, 10)
    a(f"""
    v_lshlrev_b32 v10, 4, v1
    v_lshl_add_u32 v11, v2, 10, v10      ; lane*16 + 1024 w
    v_lshl_add_u32 v10, v2, 13, v10      ; lane*16 + 8192 w
    s_barrier
    """)
    for J in range(8):
        a(f"ds_write_b128 v11, v[{AC[J]}:{AC[J]+3}] offset:{4096*J}")
    a(f"""
    v_lshlrev_b32 v44, 5, v3
    v_lshl_add_u32 v44, v4, 3, v44
    v_lshl_add_u32 v44, v2, 10, v44      ; 2t base = 1024w + 32 j + 8 q
    s_waitcnt lgkmcnt(0)
    s_barrier
    """)
    for jj in range(2):
        for w in range(4):
            a(f"ds_read_b128 v[{48+16*jj+4*w}:{51+16*jj+4*w}], v10 offset:{4096*jj+1024*w}")
        a(f"ds_read_b64 v[{80+4*jj}:{81+4*jj}], v44 offset:{U+512+512*jj}")
        a(f"ds_read_b64 v[{82+4*jj}:{83+4*jj}], v44 offset:{X+512*jj}")
    a(f"""
    s_add_u32 s26, s16, {HT_OFF}
    s_addc_u32 s27, s17, 0
    v_add_u32 v45, s23, v44
    v_mov_b32 v46, s25
    """)
    for jj in range(2):
        b = 48 + 16 * jj
        a(f"s_waitcnt lgkmcnt({6-6*jj})")
        a(f"""
        v_pk_add_f32 v[{b}:{b+1}], v[{b}:{b+1}], v[{b+4}:{b+5}]
        v_pk_add_f32 v[{b+2}:{b+3}], v[{b+2}:{b+3}], v[{b+6}:{b+7}]
        v_pk_add_f32 v[{b+8}:{b+9}], v[{b+8}:{b+9}], v[{b+12}:{b+13}]
        v_pk_add_f32 v[{b+10}:{b+11}], v[{b+10}:{b+11}], v[{b+14}:{b+15}]
        v_pk_add_f32 v[{b}:{b+1}], v[{b}:{b+1}], v[{b+8}:{b+9}]
        v_pk_add_f32 v[{b+2}:{b+3}], v[{b+2}:{b+3}], v[{b+10}:{b+11}]
        """)
        for k in range(2):
            y = b + 2 * k
            u, x = 80 + 4 * jj + k, 82 + 4 * jj + k
            t0, t1 = b + 4, b + 6
            a(f"""
            v_cvt_pk_bf16_f32 v{y}, v{y}, v{y+1}
            v_lshlrev_b32 v{t0}, 16, v{u}
            v_and_b32 v{t0+1}, 0xffff0000, v{u}
            v_pk_mul_f32 v[{t0}:{t0+1}], v[{t0}:{t0+1}], v[46:47] op_sel:[0,0] op_sel_hi:[1,0]
            v_cvt_pk_bf16_f32 v{t1}, v{t0}, v{t0+1}
            v_lshlrev_b32 v{t0}, 16, v{t1}
            v_and_b32 v{t0+1}, 0xffff0000, v{t1}
            v_and_b32 v{y+1}, 0xffff0000, v{y}
            v_lshlrev_b32 v{y}, 16, v{y}
            v_pk_add_f32 v[{t0}:{t0+1}], v[{t0}:{t0+1}], v[{y}:{y+1}]
            v_cvt_pk_bf16_f32 v{t1}, v{t0}, v{t0+1}
            v_lshlrev_b32 v{t0}, 16, v{t1}
            v_and_b32 v{t0+1}, 0xffff0000, v{t1}
            v_lshlrev_b32 v{y}, 16, v{x}
            v_and_b32 v{y+1}, 0xffff0000, v{x}
            v_pk_add_f32 v[{t0}:{t0+1}], v[{t0}:{t0+1}], v[{y}:{y+1}]
            v_cvt_pk_bf16_f32 v{b+8+k}, v{t0}, v{t0+1}
            """)
        a(f"global_store_dwordx2 v45, v[{b+8}:{b+9}], s[26:27] offset:{512*jj}")
    stamp_dump(a, 12, 16, 17, STAMP_OFF + 0x100000)
    a("B_end:\ns_endpgm")
    return name, 168
```

```python
from asmlib import *
from layout import *
from kA import srd, bf16r, f32bits
from kB import stamp, stamp_dump
from gemm import *
import math, os
XP = os.environ.get('XP', '')

C_GRID = 256
LA = int(os.environ.get('C_LA', '3'))
SB, S, NS = 30720, max(LA, 3), 10
CSL = 0
BASE = 512
C_LDS = BASE + SB * S
K1 = -2 * math.sqrt(2 / math.pi) * math.log2(math.e)
K2 = K1 * 0.044715


def lnstats(a, s1, s2, n):
    for (x, y) in zip(s1, s2):
        a(f"v_mul_f32 v{x}, {hex(f32bits(1.0/n))}, v{x}\nv_mul_f32 v{y}, {hex(f32bits(1.0/n))}, v{y}")
    for (x, y) in zip(s1, s2):
        a(f"v_fma_f32 v{y}, -v{x}, v{x}, v{y}")
    for y in s2:
        a(f"v_max_f32 v{y}, 0, v{y}")
    for y in s2:
        bf16r(a, y, y)
    for y in s2:
        a(f"v_add_f32 v{y}, {hex(f32bits(1e-5))}, v{y}")
    for y in s2:
        bf16r(a, y, y)
    for y in s2:
        a(f"v_sqrt_f32 v{y}, v{y}")
    for x in s1:
        bf16r(a, x, x)
    for y in s2:
        bf16r(a, y, y)
    for y in s2:
        a(f"v_rcp_f32 v{y}, v{y}")


def gen_C(a):
    name = "gemm1_kernel"
    kernel_header(a, name)
    a(f"""
    s_cmp_ge_u32 s2, {C_GRID}
    s_cbranch_scc1 C_end
    """)
    stamp(a, 0)
    a(f"""
    s_load_dwordx2 s[6:7], s[0:1], {KA['ws']}
    v_and_b32 v1, 63, v0                 ; lane
    v_lshrrev_b32 v2, 6, v0              ; wave
    v_and_b32 v3, 15, v0                 ; i16
    v_readfirstlane_b32 s3, v2
    v_bfe_u32 v4, v0, 4, 2               ; q
    s_and_b32 s9, s2, 3                  ; x&3
    s_lshr_b32 s10, s2, 6                ; B
    s_lshl_b32 s10, s10, 2
    s_add_u32 s10, s10, s9               ; rb
    s_bfe_u32 s9, s2, 0x10002            ; x>>2
    s_lshl_b32 s9, s9, 3
    s_bfe_u32 s8, s2, 0x30003            ; j&7
    s_add_u32 s11, s8, s9                ; n
    s_and_b32 s12, s3, 3
    v_lshlrev_b32 v8, 4, v1              ; lane*16
    s_cmp_lt_u32 s3, 4
    s_cbranch_scc1 C_comp
    """)
    a(f"""
    v_lshrrev_b32 v5, 1, v3              ; c16>>1
    v_xor_b32 v6, v5, v4                 ; ^r
    v_xor_b32 v7, 4, v6                  ; ^(4+r)
    v_and_b32 v5, 1, v3
    v_lshl_or_b32 v6, v6, 1, v5
    v_lshl_or_b32 v7, v7, 1, v5
    s_lshl_b32 s13, s12, 4
    v_add_u32 v5, s13, v4                ; 16l + r
    v_lshlrev_b32 v5, 12, v5
    v_lshl_add_u32 v10, v6, 4, v5        ; i=0
    v_lshl_add_u32 v11, v7, 4, v5
    v_add_u32 v11, {4*4096-1024}, v11    ; i=1 (offset 1024)
    v_add_u32 v12, {8*4096-2048}, v10    ; i=2 (offset 2048)
    v_add_u32 v13, {8*4096-2048}, v11    ; i=3 (offset 3072)
    s_mul_i32 s47, s12, 3584
    v_add_u32 v14, s47, v8               ; B voffset
    s_add_u32 s47, s47, 16384
    s_lshl_b32 s46, s12, 12
    s_lshl_b32 s44, s10, 8
    s_mov_b32 s45, 0                     ; B soffset
    s_mul_i32 s14, s11, {10*14336}
    s_waitcnt lgkmcnt(0)
    """)
    srd(a, 16, 6, 7, HT_OFF, L * D * 2)
    a(f"s_add_u32 s20, s6, s14\ns_addc_u32 s21, s7, 0\ns_add_u32 s20, s20, {WINT_OFF}\ns_addc_u32 s21, s21, 0\ns_mov_b32 s22, {10*14336}\ns_mov_b32 s23, 0x00020000")

    def dma():
        return [
            "s_add_u32 m0, s40, s46\nbuffer_load_dwordx4 v10, s[16:19], s44 offen lds",
            "buffer_load_dwordx4 v11, s[16:19], s44 offen offset:1024 lds",
            "buffer_load_dwordx4 v12, s[16:19], s44 offen offset:2048 lds",
            "buffer_load_dwordx4 v13, s[16:19], s44 offen offset:3072 lds",
            "s_add_u32 m0, s40, s47\nbuffer_load_dwordx4 v14, s[20:23], s45 offen lds",
            "buffer_load_dwordx4 v14, s[20:23], s45 offen offset:1024 lds",
            "buffer_load_dwordx4 v14, s[20:23], s45 offen offset:2048 lds",
            "s_mov_b64 exec, 0xffffffff\nbuffer_load_dwordx4 v14, s[20:23], s45 offen offset:3072 lds\ns_mov_b64 exec, -1",
        ]

    def adv():
        return f"s_add_u32 s44, s44, {64*4096}\ns_add_u32 s45, s45, 14336"

    loader(a, "C", NS, S, LA, SB, 8, dma, adv, BASE, "C_fin")
    a(f"""
    C_comp:
    v_lshlrev_b32 v9, 2, v0
    s_mul_i32 s15, s11, 448
    v_bfe_u32 v5, v1, 2, 2               ; r
    v_lshl_add_u32 v6, v4, 2, v5         ; 4q+r
    v_and_b32 v7, 7, v6
    s_lshl_b32 s28, s12, 1
    v_xor_b32 v7, s28, v7
    v_lshlrev_b32 v6, 8, v6
    v_lshl_add_u32 v6, v7, 5, v6
    v_and_b32 v5, 3, v1
    v_lshl_add_u32 v20, v5, 3, v6
    v_xor_b32 v21, 32, v20
    s_mov_b32 s52, 0x3f803f80
    s_waitcnt lgkmcnt(0)
    """)
    srd(a, 24, 6, 7, CSP_OFF, 5 * 16 * 112 * 4)
    for p in range(5):
        a(f"s_add_u32 s28, s15, {p*16*448}\nbuffer_load_dword v{14+p}, v9, s[24:27], s28 offen")
    for k in range(72):
        a(f"v_mov_b32 v{32+k}, 0")
    for k in range(4):
        a(f"v_mov_b32 v{104+k}, s52")
    srd(a, 28, 6, 7, HF_OFF, L * D * 2)
    a(f"""
    s_lshl_b32 s53, s10, 3
    s_lshl_b32 s54, s12, 1
    s_add_u32 s53, s53, s54
    s_mul_i32 s54, s53, 20
    s_lshl_b32 s55, s11, 1
    s_add_u32 s54, s54, s55
    s_lshl_b32 s54, s54, 10
    s_add_u32 s55, s54, {20*1024}
    s_waitcnt vmcnt(0)
    v_add_f32 v14, v14, v15
    v_add_f32 v16, v16, v17
    v_add_f32 v14, v14, v18
    v_add_f32 v14, v14, v16
    v_cmp_gt_u32 vcc, 112, v0
    s_and_saveexec_b64 s[56:57], vcc
    ds_write_b32 v9, v14 offset:{CSL}
    s_mov_b64 exec, s[56:57]
    """)
    stamp(a, 1)
    ACC = lambda g, jt: 32 + 8 * g + 4 * jt
    SUM = lambda jt: 88 + 4 * jt
    SQ = lambda jt: 96 + 4 * jt
    HFR = lambda s, kk, jt: 108 + 72 * s + 8 * kk + 4 * jt
    WFR = lambda s, kk, g: 108 + 72 * s + 16 + 28 * kk + 4 * g

    def rd_addr():
        return "v_add_u32 v23, s41, v20\nv_add_u32 v24, s41, v21\nv_add_u32 v25, s41, v8"

    def rd(s):
        o = []
        for kk in range(2):
            for jt in range(2):
                r = HFR(s, kk, jt)
                o.append(f"ds_read_b64_tr_b16 v[{r}:{r+1}], v{23+jt} offset:{8192*kk}")
                o.append(f"ds_read_b64_tr_b16 v[{r+2}:{r+3}], v{23+jt} offset:{8192*kk+4096}")
            for g in range(7):
                r = WFR(s, kk, g)
                o.append(f"ds_read_b128 v[{r}:{r+3}], v25 offset:{16384+2048*g+1024*kk}")
        return o

    def mfma(c, x, y):
        return f"v_mfma_f32_16x16x32_bf16 v[{c}:{c+3}], v[{x}:{x+3}], v[{y}:{y+3}], v[{c}:{c+3}]"

    def mm(s):
        o = []
        for kk in range(2):
            for g in range(7):
                for jt in range(2):
                    o.append(mfma(ACC(g, jt), WFR(s, kk, g), HFR(s, kk, jt)))
            if 'd' not in XP:
                for jt in range(2):
                    o.append(mfma(SUM(jt), 104, HFR(s, kk, jt)))
                    o.append(mfma(SQ(jt), HFR(s, kk, jt), HFR(s, kk, jt)))
        return o

    def extra(s):
        lb = a.label("C_hf")
        o = f"s_cmp_lg_u32 s42, s11\ns_cbranch_scc1 {lb}\n"
        for kk in range(2):
            for jt in range(2):
                h = HFR(s, kk, jt)
                o += f"buffer_store_dwordx4 v[{h}:{h+3}], v8, s[28:31], s{54+jt} offen offset:{1024*kk}\n"
        return [o + f"{lb}:"]

    consumer(a, "C", NS, S, SB, rd_addr, rd, mm, BASE, extra)
    stamp(a, 2)
    a(f"""
    v_lshlrev_b32 v30, 4, v4
    v_lshrrev_b32 v5, 2, v3
    v_lshl_add_u32 v5, v5, 4, v3
    v_lshlrev_b32 v5, 2, v5
    v_and_b32 v6, 3, v3
    v_cmp_eq_u32 s[56:57], 1, v6
    v_cmp_eq_u32 s[58:59], 2, v6
    v_cmp_eq_u32 vcc, 3, v6
    s_waitcnt lgkmcnt(0)
    """)
    CS = lambda g: 108 + 4 * g
    for g in range(7):
        a(f"ds_read_b128 v[{CS(g)}:{CS(g)+3}], v30 offset:{CSL+64*g}")
    for jt in range(2):
        q = SQ(jt)
        a(f"""
        v_cndmask_b32 v{q}, v{q}, v{q+1}, s[56:57]
        v_cndmask_b32 v{q+2}, v{q+2}, v{q+3}, vcc
        """)
    a("s_or_b64 s[58:59], s[58:59], vcc")
    for jt in range(2):
        q = SQ(jt)
        a(f"v_cndmask_b32 v{q}, v{q}, v{q+2}, s[58:59]")
        a(f"ds_bpermute_b32 v{q}, v5, v{q}")
    a(f"""
    v_mov_b32 v26, {hex(f32bits(K1))}
    v_mov_b32 v28, {hex(f32bits(K2))}
    s_and_b32 s56, s11, 1                 ; p
    s_lshr_b32 s57, s11, 1                ; a
    s_waitcnt lgkmcnt(0)
    """)
    lnstats(a, [SUM(0), SUM(1)], [SQ(0), SQ(1)], D)
    ZP = lambda g, jt: 136 + 4 * g + 2 * jt
    X = lambda i: 164 + 2 * i
    Tm = lambda i: 172 + 2 * i
    P = [(jt, k) for jt in range(2) for k in range(2)]

    def gelu(g):
        for i, (jt, k) in enumerate(P):
            c = ACC(g, jt) + 2 * k
            a(f"v_pk_fma_f32 v[{c}:{c+1}], v[{CS(g)+2*k}:{CS(g)+2*k+1}], v[{SUM(jt)}:{SUM(jt)+1}], v[{c}:{c+1}] op_sel:[0,0,0] op_sel_hi:[1,0,1] neg_lo:[0,1,0] neg_hi:[0,1,0]")
        for i, (jt, k) in enumerate(P):
            c = ACC(g, jt) + 2 * k
            a(f"v_pk_mul_f32 v[{c}:{c+1}], v[{c}:{c+1}], v[{SQ(jt)}:{SQ(jt)+1}] op_sel:[0,0] op_sel_hi:[1,0]")
        for i, (jt, k) in enumerate(P):
            c = ACC(g, jt) + 2 * k
            a(f"v_cvt_pk_bf16_f32 v{Tm(i)}, v{c}, v{c+1}")
        for i in range(4):
            a(f"v_lshlrev_b32 v{X(i)}, 16, v{Tm(i)}\nv_and_b32 v{X(i)+1}, 0xffff0000, v{Tm(i)}")
        for i in range(4):
            a(f"v_pk_mul_f32 v[{Tm(i)}:{Tm(i)+1}], v[{X(i)}:{X(i)+1}], v[{X(i)}:{X(i)+1}]")
        for i in range(4):
            a(f"v_pk_fma_f32 v[{Tm(i)}:{Tm(i)+1}], v[{Tm(i)}:{Tm(i)+1}], v[28:29], v[26:27] op_sel:[0,0,0] op_sel_hi:[1,0,0]")
        for i in range(4):
            a(f"v_pk_mul_f32 v[{Tm(i)}:{Tm(i)+1}], v[{Tm(i)}:{Tm(i)+1}], v[{X(i)}:{X(i)+1}]")
        for i in range(4):
            a(f"v_exp_f32 v{Tm(i)}, v{Tm(i)}\nv_exp_f32 v{Tm(i)+1}, v{Tm(i)+1}")
        for i in range(4):
            a(f"v_pk_add_f32 v[{Tm(i)}:{Tm(i)+1}], v[{Tm(i)}:{Tm(i)+1}], 1.0 op_sel_hi:[1,0]")
        for i in range(4):
            a(f"v_rcp_f32 v{Tm(i)}, v{Tm(i)}\nv_rcp_f32 v{Tm(i)+1}, v{Tm(i)+1}")
        for i in range(4):
            a(f"v_pk_mul_f32 v[{Tm(i)}:{Tm(i)+1}], v[{Tm(i)}:{Tm(i)+1}], v[{X(i)}:{X(i)+1}]")
        for i, (jt, k) in enumerate(P):
            a(f"v_cvt_pk_bf16_f32 v{ZP(g,jt)+k}, v{Tm(i)}, v{Tm(i)+1}")

    ST = [180, 181, 182, 183]

    def zstats(g, first):
        for k in range(2):
            for jt in range(2):
                z = ZP(g, jt) + k
                f = first and k == 0
                a(f"v_dot2_f32_bf16 v{ST[2*jt]}, v{z}, s52, {'0' if f else 'v%d' % ST[2*jt]}")
                a(f"v_dot2_f32_bf16 v{ST[2*jt+1]}, v{z}, v{z}, {'0' if f else 'v%d' % ST[2*jt+1]}")

    for g in range(3):
        gelu(g)
        zstats(g, g == 0)
    a("s_cmp_eq_u32 s56, 1\ns_cbranch_scc1 C_s3")
    gelu(3)
    zstats(3, False)
    a("C_s3:")
    qreduce(a, ST, [184, 185, 186, 187])
    srd(a, 16, 6, 7, ZST_OFF, 2048 * 128)
    a(f"""
    v_cmp_eq_u32 vcc, 0, v4
    v_max_f32 v{ST[1]}, 0, v{ST[1]}
    v_max_f32 v{ST[3]}, 0, v{ST[3]}
    v_cndmask_b32 v184, v{ST[2]}, v{ST[0]}, vcc
    v_cndmask_b32 v185, v{ST[3]}, v{ST[1]}, vcc
    v_lshlrev_b32 v5, 7, v1
    s_lshl_b32 s59, s53, 11
    s_lshl_b32 s49, s11, 3
    s_add_u32 s49, s49, s59
    s_mov_b64 exec, 0xffffffff
    buffer_store_dwordx2 v[184:185], v5, s[16:19], s49 offen sc0 sc1
    s_mov_b64 exec, -1
    """)
    stamp(a, 3)
    srd(a, 20, 6, 7, Z1_OFF, 128 * 56 * 512)
    a(f"""
    v_lshlrev_b32 v9, 3, v1
    s_mul_i32 s48, s53, 56
    s_mul_i32 s49, s57, 7
    s_add_u32 s48, s48, s49
    s_mul_i32 s49, s56, 3
    s_sub_u32 s48, s48, s49
    s_add_u32 s48, s48, 3
    s_lshl_b32 s48, s48, 9
    s_add_u32 s49, s48, {56*512}
    s_cmp_eq_u32 s56, 0
    s_cbranch_scc1 C_z1b
    """)

    def z1store(g):
        a(f"buffer_store_dwordx2 v[{ZP(g,0)}:{ZP(g,0)+1}], v9, s[20:23], s48 offen offset:{512*(g-3)}")
        a(f"buffer_store_dwordx2 v[{ZP(g,1)}:{ZP(g,1)+1}], v9, s[20:23], s49 offen offset:{512*(g-3)}")

    gelu(3)
    z1store(3)
    a("C_z1b:")
    for g in range(4, 7):
        gelu(g)
        z1store(g)
    a(f"""
    v_lshlrev_b32 v5, 7, v3
    v_lshl_add_u32 v5, v4, 5, v5          ; i*128 + 32 q
    s_mul_i32 s49, s3, 4352
    s_add_u32 s49, s49, {BASE}
    v_mul_u32_u24 v6, 136, v3
    v_lshl_add_u32 v6, v4, 3, v6
    v_add_u32 v6, s49, v6
    v_bfe_u32 v7, v1, 2, 4                ; 4q+r
    v_mul_u32_u24 v7, 136, v7
    v_and_b32 v9, 3, v1
    v_lshl_add_u32 v7, v9, 3, v7
    v_add_u32 v7, s49, v7
    """)
    stamp(a, 4)
    a(f"""
    C_poll:
    buffer_load_dwordx4 v[32:35], v5, s[16:19], s59 offen sc0 sc1
    buffer_load_dwordx4 v[36:39], v5, s[16:19], s59 offen offset:16 sc0 sc1
    buffer_load_dwordx4 v[40:43], v5, s[16:19], s59 offen offset:2048 sc0 sc1
    buffer_load_dwordx4 v[44:47], v5, s[16:19], s59 offen offset:2064 sc0 sc1
    s_waitcnt vmcnt(0)
    v_or3_b32 v48, v33, v35, v37
    v_or3_b32 v49, v39, v41, v43
    v_or3_b32 v48, v48, v45, v47
    v_or_b32 v48, v48, v49
    v_cmp_gt_i32 vcc, 0, v48
    s_cbranch_vccz C_ready
    s_sleep 2
    s_branch C_poll
    C_ready:
    v_pk_add_f32 v[32:33], v[32:33], v[34:35]
    v_pk_add_f32 v[36:37], v[36:37], v[38:39]
    v_pk_add_f32 v[40:41], v[40:41], v[42:43]
    v_pk_add_f32 v[44:45], v[44:45], v[46:47]
    v_pk_add_f32 v[32:33], v[32:33], v[36:37]
    v_pk_add_f32 v[34:35], v[40:41], v[44:45]
    """)
    stamp(a, 5)
    qreduce(a, [32, 33, 34, 35], [36, 37, 38, 39])
    lnstats(a, [32, 34], [33, 35], FH)
    for g in range(4):
        for i, (jt, k) in enumerate(P):
            z = ZP(g, jt) + k
            a(f"v_lshlrev_b32 v{X(i)}, 16, v{z}\nv_and_b32 v{X(i)+1}, 0xffff0000, v{z}")
        for i, (jt, k) in enumerate(P):
            a(f"v_pk_add_f32 v[{X(i)}:{X(i)+1}], v[{X(i)}:{X(i)+1}], v[{32+2*jt}:{33+2*jt}] op_sel:[0,0] op_sel_hi:[1,0] neg_lo:[0,1] neg_hi:[0,1]")
        for i, (jt, k) in enumerate(P):
            a(f"v_cvt_pk_bf16_f32 v{Tm(i)}, v{X(i)}, v{X(i)+1}")
        for i, (jt, k) in enumerate(P):
            a(f"v_lshlrev_b32 v{X(i)}, 16, v{Tm(i)}\nv_and_b32 v{X(i)+1}, 0xffff0000, v{Tm(i)}")
        for i, (jt, k) in enumerate(P):
            a(f"v_pk_mul_f32 v[{X(i)}:{X(i)+1}], v[{X(i)}:{X(i)+1}], v[{32+2*jt}:{33+2*jt}] op_sel:[0,1] op_sel_hi:[1,1]")
        for i, (jt, k) in enumerate(P):
            a(f"v_cvt_pk_bf16_f32 v{40+4*g+2*jt+k}, v{X(i)}, v{X(i)+1}")
        for jt in range(2):
            a(f"ds_write_b64 v6, v[{40+4*g+2*jt}:{41+4*g+2*jt}] offset:{16*136*jt+32*g}")
    srd(a, 16, 6, 7, Z2T_OFF, 8 * 32 * 14 * 1024)
    a(f"""
    s_lshl_b32 s59, s57, 5                ; a*32
    s_lshr_b32 s49, s53, 2
    s_add_u32 s59, s59, s49
    s_mul_i32 s59, s59, 14
    s_lshl_b32 s49, s56, 3                ; 2*gl0
    s_add_u32 s59, s59, s49
    s_and_b32 s49, s12, 1
    s_add_u32 s59, s59, s49
    s_lshl_b32 s59, s59, 10
    s_waitcnt lgkmcnt(0)
    """)
    for g in range(4):
        for jt in range(2):
            a(f"ds_read_b64_tr_b16 v[{40+4*g+2*jt}:{41+4*g+2*jt}], v7 offset:{16*136*jt+32*g}")
    for g in range(4):
        if g == 3:
            a("s_cmp_eq_u32 s56, 1\ns_cbranch_scc1 C_fin")
        a(f"s_waitcnt lgkmcnt({6-2*g})")
        a(f"s_add_u32 s49, s59, {2048*g}")
        a(f"buffer_store_dwordx4 v[{40+4*g}:{43+4*g}], v8, s[16:19], s49 offen")
    a("C_fin:")
    stamp_dump(a, 7, 6, 7, STAMP_OFF + 0x200000)
    a("C_end:\ns_endpgm")
    return name, 256
```

```python
from asmlib import *
from layout import *
from kA import srd, bf16r, f32bits
from kB import stamp, stamp_dump
from gemm import *
import os

D_GRID = 256
LA = int(os.environ.get('D_LA', '4'))
SB, S, NS = 22528, max(LA, 3), 32
BASE = 0
D_LDS = BASE + SB * S


def gen_D(a):
    name = "gemm2_kernel"
    kernel_header(a, name)
    a(f"""
    s_cmp_ge_u32 s2, {D_GRID}
    s_cbranch_scc1 D_end
    """)
    stamp(a, 0)
    a(f"""
    s_load_dwordx2 s[6:7], s[0:1], {KA['ws']}
    s_load_dwordx4 s[8:11], s[0:1], {KA['w_sp']}
    v_and_b32 v1, 63, v0                 ; lane
    v_lshrrev_b32 v2, 6, v0              ; wave
    v_and_b32 v3, 15, v0                 ; i16
    v_readfirstlane_b32 s3, v2
    v_bfe_u32 v4, v0, 4, 2               ; q
    s_and_b32 s13, s2, 3                 ; gx
    s_lshl_b32 s13, s13, 3
    s_bfe_u32 s14, s2, 0x30003           ; j&7
    s_add_u32 s13, s13, s14              ; mt
    s_bfe_u32 s14, s2, 0x10002           ; gy
    s_lshl_b32 s14, s14, 2
    s_lshr_b32 s15, s2, 6
    s_add_u32 s14, s14, s15              ; a
    s_and_b32 s12, s3, 3
    v_lshlrev_b32 v8, 4, v1              ; lane*16
    s_cmp_lt_u32 s3, 4
    s_cbranch_scc1 D_comp
    """)
    a(f"""
    v_lshrrev_b32 v5, 3, v1              ; r 0..7
    v_lshrrev_b32 v6, 1, v5              ; f for i=0
    v_and_b32 v7, 7, v1
    v_xor_b32 v6, v6, v7                 ; c ^ f
    v_xor_b32 v7, 4, v6
    s_lshl_b32 s15, s13, 6
    s_lshl_b32 s16, s12, 4
    s_add_u32 s15, s15, s16
    v_add_u32 v5, s15, v5
    v_lshlrev_b32 v5, 12, v5
    v_lshl_add_u32 v10, v6, 4, v5
    v_lshl_add_u32 v11, v7, 4, v5
    v_add_u32 v11, {8*4096-1024}, v11
    s_mul_i32 s47, s12, 3584
    v_add_u32 v14, s47, v8
    s_add_u32 s47, s47, 8192
    s_lshl_b32 s46, s12, 11
    s_mov_b32 s44, 0
    s_mov_b32 s45, 0
    s_mul_i32 s15, s14, {32*14336}
    s_waitcnt lgkmcnt(0)
    """)
    srd(a, 16, 8, 9, 0, L * L * 2)
    a(f"s_add_u32 s20, s6, s15\ns_addc_u32 s21, s7, 0\ns_add_u32 s20, s20, {Z2T_OFF}\ns_addc_u32 s21, s21, 0\ns_mov_b32 s22, {32*14336}\ns_mov_b32 s23, 0x00020000")

    def dma():
        return [
            "s_add_u32 m0, s40, s46\nbuffer_load_dwordx4 v10, s[16:19], s44 offen lds",
            "buffer_load_dwordx4 v11, s[16:19], s44 offen offset:1024 lds",
            "s_add_u32 m0, s40, s47\nbuffer_load_dwordx4 v14, s[20:23], s45 offen lds",
            "buffer_load_dwordx4 v14, s[20:23], s45 offen offset:1024 lds",
            "buffer_load_dwordx4 v14, s[20:23], s45 offen offset:2048 lds",
            "s_mov_b64 exec, 0xffffffff\nbuffer_load_dwordx4 v14, s[20:23], s45 offen offset:3072 lds\ns_mov_b64 exec, -1",
        ]

    def adv():
        return f"s_add_u32 s44, s44, 128\ns_add_u32 s45, s45, 14336"

    loader(a, "D", NS, S, LA, SB, 6, dma, adv, BASE, "D_fin")
    a(f"""
    D_comp:
    v_lshrrev_b32 v5, 1, v3              ; f(i)
    v_lshrrev_b32 v6, 1, v4              ; q>>1
    v_xor_b32 v5, v5, v6
    v_lshlrev_b32 v5, 4, v5
    v_lshl_add_u32 v5, v3, 7, v5
    v_and_b32 v6, 1, v4
    v_lshl_add_u32 v5, v6, 3, v5
    s_lshl_b32 s15, s12, 11
    v_add_u32 v20, s15, v5
    s_lshl_b32 s53, s13, 2
    s_add_u32 s53, s53, s12
    v_lshlrev_b32 v9, 3, v1
    v_lshlrev_b32 v7, 1, v3
    s_lshl_b32 s15, s53, 5
    v_add_u32 v7, s15, v7
    s_mul_i32 s48, s53, 56
    s_mul_i32 s49, s14, 7
    s_add_u32 s48, s48, s49
    s_lshl_b32 s48, s48, 9
    s_waitcnt lgkmcnt(0)
    global_load_ushort v30, v7, s[10:11]
    """)
    srd(a, 20, 6, 7, Z1_OFF, 128 * 56 * 512)
    Z1R = lambda g: 140 + 2 * g
    for g in range(7):
        a(f"buffer_load_dwordx2 v[{Z1R(g)}:{Z1R(g)+1}], v9, s[20:23], s48 offen offset:{512*g}")
    for k in range(28):
        a(f"v_mov_b32 v{32+k}, 0")
    stamp(a, 1)
    ACC = lambda g: 32 + 4 * g
    WF = lambda s, kk: 60 + 40 * s + 4 * kk
    ZF = lambda s, kk, g: 0
    WF = lambda s, kk: 156 + 8 * s + 4 * kk + 0
    ZF = lambda s, kk, g: (60 if s == 0 else 172) + 28 * kk + 4 * g

    def rd_addr():
        return "v_add_u32 v21, s41, v20\nv_xor_b32 v22, 32, v21\nv_xor_b32 v23, 64, v21\nv_xor_b32 v24, 96, v21\nv_add_u32 v25, s41, v8"

    def rd(s):
        o = []
        for kk in range(2):
            r = WF(s, kk)
            o.append(f"ds_read_b64 v[{r}:{r+1}], v{21+2*kk}")
            o.append(f"ds_read_b64 v[{r+2}:{r+3}], v{22+2*kk}")
            for g in range(7):
                r = ZF(s, kk, g)
                o.append(f"ds_read_b128 v[{r}:{r+3}], v25 offset:{8192+2048*g+1024*kk}")
        return o

    def mm(s):
        o = []
        for kk in range(2):
            for g in range(7):
                c, x, y = ACC(g), ZF(s, kk, g), WF(s, kk)
                o.append(f"v_mfma_f32_16x16x32_bf16 v[{c}:{c+3}], v[{x}:{x+3}], v[{y}:{y+3}], v[{c}:{c+3}]")
        return o

    consumer(a, "D", NS, S, SB, rd_addr, rd, mm, BASE, span=12)
    stamp(a, 2)
    a(f"s_mul_i32 s15, s13, {27*4096}\ns_add_u32 s16, s6, s15\ns_addc_u32 s17, s7, 0\ns_add_u32 s16, s16, {P_OFF}\ns_addc_u32 s17, s17, 0\ns_mov_b32 s18, {27*4096}\ns_mov_b32 s19, 0x00020000")
    a(f"""
    s_waitcnt vmcnt(0) lgkmcnt(0)
    v_lshlrev_b32 v30, 16, v30
    s_mul_i32 s49, s14, 7                ; G0
    s_lshl_b32 s50, s12, 10
    """)
    for g in range(7):
        c = ACC(g)
        X = [60 + 8 * g + 2 * i for i in range(4)]
        for k in range(2):
            a(f"v_cvt_pk_bf16_f32 v{c+2*k}, v{c+2*k}, v{c+2*k+1}")
        for k in range(2):
            a(f"v_and_b32 v{c+2*k+1}, 0xffff0000, v{c+2*k}\nv_lshlrev_b32 v{c+2*k}, 16, v{c+2*k}")
        for k in range(2):
            a(f"v_pk_add_f32 v[{c+2*k}:{c+2*k+1}], v[{c+2*k}:{c+2*k+1}], v[30:31] op_sel:[0,0] op_sel_hi:[1,0]")
        for k in range(2):
            a(f"v_cvt_pk_bf16_f32 v{c+2*k}, v{c+2*k}, v{c+2*k+1}")
        for k in range(2):
            a(f"v_and_b32 v{c+2*k+1}, 0xffff0000, v{c+2*k}\nv_lshlrev_b32 v{c+2*k}, 16, v{c+2*k}")
            a(f"v_lshlrev_b32 v{X[k]}, 16, v{Z1R(g)+k}\nv_and_b32 v{X[k]+1}, 0xffff0000, v{Z1R(g)+k}")
        for k in range(2):
            a(f"v_pk_mul_f32 v[{c+2*k}:{c+2*k+1}], v[{c+2*k}:{c+2*k+1}], v[{X[k]}:{X[k]+1}]")
        for k in range(2):
            a(f"v_cvt_pk_bf16_f32 v{X[2]+k}, v{c+2*k}, v{c+2*k+1}")
        a(f"""
        s_add_u32 s51, s49, {g}
        s_lshr_b32 s52, s51, 1
        s_lshl_b32 s52, s52, 12
        s_and_b32 s51, s51, 1
        s_lshl_b32 s51, s51, 3
        s_add_u32 s52, s52, s51
        s_add_u32 s52, s52, s50
        buffer_store_dwordx2 v[{X[2]}:{X[2]+1}], v8, s[16:19], s52 offen
        """)
    a("D_fin:")
    stamp_dump(a, 4, 6, 7, STAMP_OFF + 0x300000)
    a("D_end:\ns_endpgm")
    return name, 232
```

```python
from asmlib import *
from layout import *
from kA import srd, bf16r, f32bits
from kB import stamp, stamp_dump
from gemm import *
import os

E_GRID = 256
LA = int(os.environ.get('E_LA', '4'))
SB, S, NS = 18432, max(LA, 3), 14
BASE = 0
E_LDS = BASE + SB * S


def gen_E(a):
    name = "gemm3_kernel"
    kernel_header(a, name)
    a(f"""
    s_cmp_ge_u32 s2, {E_GRID}
    s_cbranch_scc1 E_end
    """)
    stamp(a, 0)
    a(f"""
    s_load_dwordx2 s[6:7], s[0:1], {KA['ws']}
    s_load_dwordx2 s[8:9], s[0:1], {KA['out']}
    v_and_b32 v1, 63, v0                 ; lane
    v_lshrrev_b32 v2, 6, v0              ; wave
    v_and_b32 v3, 15, v0                 ; i16
    v_readfirstlane_b32 s3, v2
    v_bfe_u32 v4, v0, 4, 2               ; q
    s_and_b32 s13, s2, 3                 ; gx
    s_lshl_b32 s13, s13, 3
    s_bfe_u32 s14, s2, 0x30003           ; j&7
    s_add_u32 s13, s13, s14              ; mt
    s_bfe_u32 s14, s2, 0x10002           ; gy
    s_lshl_b32 s14, s14, 2
    s_lshr_b32 s15, s2, 6
    s_add_u32 s14, s14, s15              ; nt
    s_and_b32 s12, s3, 3
    v_lshlrev_b32 v8, 4, v1              ; lane*16
    s_cmp_lt_u32 s3, 4
    s_cbranch_scc1 E_comp
    """)
    a(f"""
    s_lshl_b32 s46, s12, 11
    v_add_u32 v10, s46, v8
    s_mul_i32 s47, s12, 2560
    v_add_u32 v14, s47, v8
    s_add_u32 s47, s47, 8192
    s_mov_b32 s44, 0
    s_mov_b32 s45, 0
    s_mul_i32 s15, s13, {27*4096}
    s_mul_i32 s10, s14, {27*5120}
    s_waitcnt lgkmcnt(0)
    """)
    a(f"s_add_u32 s16, s6, s15\ns_addc_u32 s17, s7, 0\ns_add_u32 s16, s16, {P_OFF}\ns_addc_u32 s17, s17, 0\ns_mov_b32 s18, {27*4096}\ns_mov_b32 s19, 0x00020000")
    a(f"s_add_u32 s20, s6, s10\ns_addc_u32 s21, s7, 0\ns_add_u32 s20, s20, {WOUT_OFF}\ns_addc_u32 s21, s21, 0\ns_mov_b32 s22, {27*5120}\ns_mov_b32 s23, 0x00020000")

    def dma():
        return [
            "s_add_u32 m0, s40, s46\nbuffer_load_dwordx4 v10, s[16:19], s44 offen lds",
            "buffer_load_dwordx4 v10, s[16:19], s44 offen offset:1024 lds",
            "s_add_u32 m0, s40, s47\nbuffer_load_dwordx4 v14, s[20:23], s45 offen lds",
            "buffer_load_dwordx4 v14, s[20:23], s45 offen offset:1024 lds",
            "s_mov_b64 exec, 0xffffffff\nbuffer_load_dwordx4 v14, s[20:23], s45 offen offset:2048 lds\ns_mov_b64 exec, -1",
        ]

    def adv():
        return f"s_add_u32 s44, s44, 8192\ns_add_u32 s45, s45, 10240"

    loader(a, "E", NS, S, LA, SB, 5, dma, adv, BASE, "E_fin")
    a(f"""
    E_comp:
    s_lshl_b32 s15, s12, 10
    v_add_u32 v20, s15, v8
    s_lshl_b32 s53, s13, 2
    s_add_u32 s53, s53, s12
    s_mul_i32 s48, s53, {20*1024}
    s_mul_i32 s49, s14, 5                ; G0
    v_mul_u32_u24 v9, 1280, v3
    v_lshl_add_u32 v9, v4, 3, v9
    s_waitcnt lgkmcnt(0)
    """)
    srd(a, 20, 6, 7, HF_OFF, L * D * 2)
    HR = lambda g: 120 + 2 * g
    for g in range(5):
        a(f"""
        s_add_u32 s51, s49, {g}
        s_lshr_b32 s52, s51, 1
        s_lshl_b32 s52, s52, 10
        s_and_b32 s51, s51, 1
        s_lshl_b32 s51, s51, 3
        s_add_u32 s52, s52, s51
        s_add_u32 s52, s52, s48
        buffer_load_dwordx2 v[{HR(g)}:{HR(g)+1}], v8, s[20:23], s52 offen
        """)
    for k in range(20):
        a(f"v_mov_b32 v{32 if False else 100 + k}, 0")
    stamp(a, 1)
    ACC = lambda g: 100 + 4 * g
    PF = lambda s, kk: 4 * 0 + (24 if s == 0 else 132) + 4 * kk + 0
    WF = lambda s, kk, g: (32 if s == 0 else 140) + 20 * kk + 4 * g

    def rd_addr():
        return "v_add_u32 v21, s41, v20\nv_add_u32 v22, s41, v8"

    def rd(s):
        o = []
        for kk in range(2):
            r = PF(s, kk)
            o.append(f"ds_read_b128 v[{r}:{r+3}], v21 offset:{4096*kk}")
            for g in range(5):
                r = WF(s, kk, g)
                o.append(f"ds_read_b128 v[{r}:{r+3}], v22 offset:{8192+5120*kk+1024*g}")
        return o

    def mm(s):
        o = []
        for kk in range(2):
            for g in range(5):
                c, x, y = ACC(g), WF(s, kk, g), PF(s, kk)
                o.append(f"v_mfma_f32_16x16x32_bf16 v[{c}:{c+3}], v[{x}:{x+3}], v[{y}:{y+3}], v[{c}:{c+3}]")
        return o

    consumer(a, "E", NS, S, SB, rd_addr, rd, mm, BASE, span=9)
    stamp(a, 2)
    srd(a, 16, 8, 9, 0, L * D * 2)
    a(f"""
    s_mul_i32 s50, s53, {16*1280}
    s_lshl_b32 s51, s49, 5
    s_add_u32 s50, s50, s51
    s_waitcnt vmcnt(0) lgkmcnt(0)
    """)
    for g in range(5):
        c = ACC(g)
        X = [32 + 8 * g + 2 * i for i in range(4)]
        for k in range(2):
            a(f"v_cvt_pk_bf16_f32 v{c+2*k}, v{c+2*k}, v{c+2*k+1}")
        for k in range(2):
            a(f"v_and_b32 v{c+2*k+1}, 0xffff0000, v{c+2*k}\nv_lshlrev_b32 v{c+2*k}, 16, v{c+2*k}")
            a(f"v_lshlrev_b32 v{X[k]}, 16, v{HR(g)+k}\nv_and_b32 v{X[k]+1}, 0xffff0000, v{HR(g)+k}")
        for k in range(2):
            a(f"v_pk_add_f32 v[{c+2*k}:{c+2*k+1}], v[{c+2*k}:{c+2*k+1}], v[{X[k]}:{X[k]+1}]")
        for k in range(2):
            a(f"v_cvt_pk_bf16_f32 v{X[2]+k}, v{c+2*k}, v{c+2*k+1}")
        a(f"buffer_store_dwordx2 v[{X[2]}:{X[2]+1}], v9, s[16:19], s50 offen offset:{32*g}")
    a("E_fin:")
    stamp_dump(a, 4, 6, 7, STAMP_OFF + 0x400000)
    a("E_end:\ns_endpgm")
    return name, 184
```

```python
L, D, N, F, FH = 2048, 640, 128, 1728, 864
XT_OFF = 0x000000
HT_OFF = 0x280000
HF_OFF = 0x500000
MST_OFF = 0x780000
CSP_OFF = 0x784000
ZST_OFF = 0x790000
WINT_OFF = 0x7D0000
WOUT_OFF = 0xA00000
Z1_OFF = 0xB10000
Z2T_OFF = 0xE90000
P_OFF = 0x1210000
WS_END = 0x1570000
KA = dict(x=0, logA=8, Aim=16, Cre=24, Cim=32, logdt=40, Dskip=48, Bx=56, w_in=64, w_sp=72, b_sp=80, w_out=88, out=96, dbg=104, ws=112)
STAMP_OFF = 0x3000000
```

```python
import sys
sys.path.insert(0, "gen")
from asmlib import *
from layout import *
import kA, kB

HEAD = open("sequential_preLN__ssm_conv_s4d__mixer_gmlp__prompt.s.ref").read().split("; Override launch geometry")[0]


def build(which="ABCDE", **opt):
    a = Asm()
    launches = []
    descs = []
    a.raw('.amdgcn_target "amdgcn-amd-amdhsa--gfx950"')
    if "A" in which:
        n, v = kA.gen_A(a); launches.append((n, kA.A_GRID, 256, kA.A_LDS)); descs.append(kernel_desc(n, v))
    if "B" in which:
        n, v = kB.gen_B(a); launches.append((n, kB.B_GRID, 256, kB.B_LDS)); descs.append(kernel_desc(n, v))
    if "C" in which:
        import kC
        n, v = kC.gen_C(a); launches.append((n, kC.C_GRID, 512, kC.C_LDS)); descs.append(kernel_desc(n, v))
    if "D" in which:
        import kD
        n, v = kD.gen_D(a); launches.append((n, kD.D_GRID, 512, kD.D_LDS)); descs.append(kernel_desc(n, v))
    if "E" in which:
        import kE
        n, v = kE.gen_E(a); launches.append((n, kE.E_GRID, 512, kE.E_LDS)); descs.append(kernel_desc(n, v))
    txt = HEAD
    for n, g, b, l in launches:
        txt += f"; @launch kernel={n} grid=({g},1,1) block=({b},1,1) lds={l}\n"
    txt += a.finalize()
    txt += "".join(descs)
    return txt


if __name__ == "__main__":
    which = sys.argv[1] if len(sys.argv) > 1 else "ABCDE"
    out = sys.argv[2] if len(sys.argv) > 2 else "sequential_preLN__ssm_conv_s4d__mixer_gmlp__prompt.s"
    open(out, "w").write(build(which))
```
